```python
import torch

def _softmax(x, axis=-1):
    return torch.softmax(x, dim=axis)
def _gelu(x):
    return torch.nn.functional.gelu(x, approximate="tanh")
def _silu(x):
    return torch.nn.functional.silu(x)
def _sigmoid(x):
    return torch.sigmoid(x)
def _layernorm(x, axis=-1, eps=1e-5):
    m = x.mean(dim=axis, keepdim=True)
    v = x.var(dim=axis, keepdim=True, unbiased=False)
    return (x - m) / torch.sqrt(v + eps)
def _scatter_add(tgt, idx, src, axis=0):
    return tgt.clone().index_add_(axis, idx, src)
def _segment_sum(src, seg, n):
    out = torch.zeros((n,) + src.shape[1:], dtype=src.dtype)
    return out.index_add_(0, seg, src)
def _pad(x, pw):
    flat = tuple(v for pair in reversed(pw) for v in pair)
    return torch.nn.functional.pad(x, flat)

kernel_name = 'sequential_preLN__gqa_block_cached__glu_gated_bilinear__decode'

def setup_inputs():

    _w = (lambda a: (lambda t: t.to(torch.bfloat16) if t.is_floating_point() else t)(torch.as_tensor(a)))
    def _A_setup():
        B, Sq, D = 8, 1, 448
        Hq, Hkv, Sk, Dh = 16, 8, 8192, 256
        assert Hq % Hkv == 0, (Hq, Hkv)
        return {
            "x": _w((lambda *s: torch.randn(*s, dtype=torch.bfloat16) * 0.05)(B, Sq, D)),
            "k_cache": _w((lambda *s: torch.randn(*s, dtype=torch.bfloat16) * 1.6)(B, Hkv, Sk, Dh)),
            "v_cache": _w((lambda *s: torch.randn(*s, dtype=torch.bfloat16) * 0.8)(B, Hkv, Sk, Dh)),
            "wq": _w((lambda *s: torch.randn(*s, dtype=torch.bfloat16) * 1.6)(D, Hq * Dh) * (D ** -0.5)),
            "wo": _w((lambda *s: torch.randn(*s, dtype=torch.bfloat16) * 0.8)(Hq * Dh, D) * ((Hq * Dh) ** -0.5)),
        }
    _A_in = _A_setup()

    def _B_setup():
        B, S, D, F = 8, 1, 448, 1792
        return {
            "x": _w((lambda *s: torch.randn(*s, dtype=torch.bfloat16) * 0.05)(B, S, D)),
            "w_gate": _w((lambda *s: torch.randn(*s, dtype=torch.bfloat16) * 0.4)(D, F) * (D ** -0.5)),
            "w_up": _w((lambda *s: torch.randn(*s, dtype=torch.bfloat16) * 0.4)(D, F) * (D ** -0.5)),
            "w_down": _w((lambda *s: torch.randn(*s, dtype=torch.bfloat16) * 0.4)(F, D) * (F ** -0.5)),
        }
    _B_in = _B_setup()

    return {
        "A_x": _A_in["x"],
        "A_k_cache": _A_in["k_cache"],
        "A_v_cache": _A_in["v_cache"],
        "A_wq": _A_in["wq"],
        "A_wo": _A_in["wo"],
        "B_x": _B_in["x"],
        "B_w_gate": _B_in["w_gate"],
        "B_w_up": _B_in["w_up"],
        "B_w_down": _B_in["w_down"],
    }

def reference(A_x, A_k_cache, A_v_cache, A_wq, A_wo, B_x, B_w_gate, B_w_up, B_w_down):
    def _A_ref(x, k_cache, v_cache, wq, wo):
        B, Sq, D = x.shape
        Hq, Dh = 16, 256
        Hkv = k_cache.shape[1]
        rep = Hq // Hkv
        q = (lambda x, *d: x.permute(*d))((x @ wq).reshape(B, Sq, Hq, Dh), 0, 2, 1, 3)
        k = (lambda x, n, axis: torch.repeat_interleave(x, n, dim=axis))(k_cache, rep, axis=1)
        v = (lambda x, n, axis: torch.repeat_interleave(x, n, dim=axis))(v_cache, rep, axis=1)
        scores = torch.einsum("bhqd,bhkd->bhqk", q, k) * (Dh ** -0.5)
        p = _softmax(scores, axis=-1)
        o = torch.einsum("bhqk,bhkd->bhqd", p, v)
        return (lambda x, *d: x.permute(*d))(o, 0, 2, 1, 3).reshape(B, Sq, Hq * Dh) @ wo

    def _B_ref(x, w_gate, w_up, w_down):
        g = torch.einsum("bsd,df->bsf", x, w_gate)
        u = torch.einsum("bsd,df->bsf", x, w_up)
        h = g * u
        return torch.einsum("bsf,fd->bsd", h, w_down)

    x = A_x
    h = x + _A_ref(_layernorm(x, axis=-1), A_k_cache, A_v_cache, A_wq, A_wo)
    h2 = h + _B_ref(_layernorm(h, axis=-1), B_w_gate, B_w_up, B_w_down)
    return h2
```

```python
import re

TRANS = ("v_exp_f32", "v_log_f32", "v_rcp_f32", "v_rsq_f32", "v_sqrt_f32", "v_sin_f32", "v_cos_f32", "v_rcp_iflag_f32")

def regs_of(tok):
    tok = tok.strip()
    tok = tok.replace("abs(", "").replace(")", "").lstrip("-").strip("|")
    m = re.fullmatch(r"([vsa])(\d+)", tok)
    if m:
        return [(m.group(1), int(m.group(2)))]
    m = re.fullmatch(r"([vsa])\[(\d+):(\d+)\]", tok)
    if m:
        return [(m.group(1), k) for k in range(int(m.group(2)), int(m.group(3)) + 1)]
    if tok in ("vcc", "vcc_lo", "vcc_hi"):
        return [("vcc", 0)]
    if tok in ("exec", "exec_lo", "exec_hi"):
        return [("exec", 0)]
    if tok == "m0":
        return [("m0", 0)]
    return []

class Inst:
    def __init__(self, text):
        self.text = text
        t = text.split(";")[0].strip()
        self.is_label = t.endswith(":")
        self.is_dir = t.startswith(".")
        self.op = ""
        self.ops = []
        self.mods = ""
        self.wr = []
        self.rd = []
        self.cls = "none"
        self.dpp = False
        if not t or self.is_label or self.is_dir:
            return
        parts = t.split(None, 1)
        self.op = parts[0]
        rest = parts[1] if len(parts) > 1 else ""
        ops = []
        depth = 0
        cur = ""
        for ch in rest:
            if ch == "[":
                depth += 1
            if ch == "]":
                depth -= 1
            if ch == "," and depth == 0:
                ops.append(cur.strip()); cur = ""
            else:
                cur += ch
        ops.append(cur.strip())
        last = ops[-1].split()
        if last:
            ops[-1] = last[0]
            self.mods = " ".join(last[1:])
        self.ops = ops
        op = self.op
        R = [regs_of(o) for o in ops]
        self.dpp = any(k in self.mods for k in ("row_", "quad_perm", "wave_"))
        if op.startswith("v_mfma"):
            self.cls = "mfma"
            self.wr = R[0]; self.A = R[1]; self.B = R[2]; self.C = R[3]
            self.rd = R[1] + R[2] + R[3]
            self.passes = 8 if "32x32" in op else 4
        elif op.startswith("v_cmp"):
            self.cls = "valu"; self.wr = R[0]; self.rd = sum(R[1:], [])
            if op.startswith("v_cmpx"):
                self.wr = self.wr + [("exec", 0)]
        elif op in ("v_readlane_b32", "v_readfirstlane_b32"):
            self.cls = "valu"; self.wr = R[0]; self.rd = sum(R[1:], [])
        elif op.startswith("v_permlane") and "swap" in op:
            self.cls = "valu"; self.wr = R[0] + R[1]; self.rd = R[0] + R[1]
        elif op.startswith("v_"):
            self.cls = "valu"
            self.wr = R[0]; self.rd = sum(R[1:], [])
            if "_co_" in op or op.startswith("v_div_scale"):
                self.wr = R[0] + R[1]; self.rd = sum(R[2:], [])
            if op.startswith(("v_fmac", "v_dot2c", "v_pk_fmac")) or self.dpp or op == "v_writelane_b32" or "d16" in op:
                self.rd = self.rd + R[0]
            if op.startswith("v_cndmask") and len(ops) == 3:
                self.rd = self.rd + [("vcc", 0)]
        elif op.startswith(("buffer_", "global_", "flat_")):
            self.cls = "vmem"
            isload = "load" in op
            isatomic = "atomic" in op
            lds = " lds" in (" " + self.mods)
            if op.startswith("buffer_"):
                if isload and not lds:
                    self.wr = R[0]; self.rd = sum(R[1:], [])
                    if "d16" in op: self.rd = self.rd + R[0]
                elif isload and lds:
                    self.rd = sum(R, []) + [("m0", 0)]
                else:
                    self.rd = sum(R, [])
                    self.data = R[0]
                    if isatomic and "sc0" in self.mods: self.wr = R[0]
            else:
                if isload:
                    self.wr = R[0]; self.rd = sum(R[1:], [])
                elif isatomic and "sc0" in self.mods:
                    self.wr = R[0]; self.rd = sum(R[1:], [])
                else:
                    self.rd = sum(R, []); self.data = R[1]
            self.wide_store = (not isload) and ("x3" in op or "x4" in op)
        elif op.startswith("ds_"):
            self.cls = "ds"
            if op.startswith(("ds_read", "ds_bpermute", "ds_permute", "ds_swizzle")) or "_rtn" in op:
                self.wr = R[0]; self.rd = sum(R[1:], [])
            else:
                self.rd = sum(R, [])
        elif op.startswith(("s_load", "s_buffer_load", "s_memtime", "s_memrealtime", "s_atomic")):
            self.cls = "smem"; self.wr = R[0]; self.rd = sum(R[1:], [])
        elif op.startswith("s_"):
            self.cls = "salu"
            if op.startswith(("s_cmp", "s_cbranch", "s_branch", "s_waitcnt", "s_barrier", "s_nop", "s_endpgm", "s_sleep", "s_setprio", "s_bitcmp")):
                self.rd = sum(R, [])
            else:
                self.wr = R[0]; self.rd = sum(R[1:], [])
                if "saveexec" in op: self.wr = self.wr + [("exec", 0)]
        self.trans = op.split("_e")[0] in TRANS or op in TRANS

    def states(self):
        if self.op == "s_nop":
            return int(self.ops[0], 0) + 1
        return 1

def insert_nops(lines, verbose=False):
    out = []
    hist = []
    pos = 0
    last = {}
    def need(key, n):
        if key in last:
            d = pos - last[key] - 1
            return max(0, n - d)
        return 0
    ninserted = 0
    for ln in lines:
        I = Inst(ln)
        if I.cls == "none":
            out.append(ln); continue
        req = 0
        rd = set(I.rd); wr = set(I.wr)
        if I.cls == "mfma":
            for r in rd:
                req = max(req, need(("valu_w", r), 2))
            for r in set(I.A + I.B):
                req = max(req, need(("mfma4_w", r), 8), need(("mfma8_w", r), 12))
            for r in set(I.C):
                for p, n in ((4, 6), (8, 10)):
                    k = (f"mfma{p}_w", r)
                    if k in last:
                        exact = last.get(("mfma_dst", r)) == (tuple(I.C), I.passes)
                        if not exact:
                            req = max(req, need(k, n))
            for r in wr - set(I.C):
                req = max(req, need(("mfma4_w", r), 8), need(("mfma8_w", r), 12))
            req = max(req, need(("valu_w", ("exec", 0)), 4))
        else:
            for r in rd | wr:
                if r[0] in ("v", "a"):
                    req = max(req, need(("mfma4_w", r), 8), need(("mfma8_w", r), 12))
            if I.cls == "valu":
                for r in wr:
                    req = max(req, need(("mfma4_c", r), 3), need(("mfma8_c", r), 7))
                    req = max(req, need(("wstore", r), 2))
                if I.dpp:
                    for r in rd:
                        req = max(req, need(("any_w", r), 2))
                    req = max(req, need(("valu_w", ("exec", 0)), 5))
                if not I.trans:
                    for r in rd:
                        req = max(req, need(("trans_w", r), 1))
                for r in rd:
                    if r[0] in ("s", "vcc"):
                        req = max(req, need(("valu_w", r), 2))
                if I.op in ("v_readlane_b32", "v_readfirstlane_b32", "v_writelane_b32"):
                    for r in rd:
                        if r[0] == "v": req = max(req, need(("valu_w", r), 1))
                        if r[0] in ("s", "vcc"): req = max(req, need(("valu_w", r), 4))
                    req = max(req, need(("valu_w", ("exec", 0)), 4))
                if I.op.startswith("v_permlane"):
                    for r in rd:
                        req = max(req, need(("valu_w", r), 2))
                    req = max(req, need(("valu_w", ("exec", 0)), 4))
                if I.op.startswith("v_div_fmas"):
                    req = max(req, need(("valu_w", ("vcc", 0)), 4))
            if I.cls in ("vmem", "ds", "smem"):
                for r in wr:
                    req = max(req, need(("wstore", r), 1))
            if I.cls == "vmem":
                for r in rd:
                    if r[0] in ("s", "vcc"):
                        req = max(req, need(("valu_w", r), 5))
                    if r[0] == "m0":
                        req = max(req, need(("salu_w", r), 1))
            if I.cls == "salu" or I.cls == "smem":
                for r in rd:
                    if r[0] in ("s", "vcc"):
                        req = max(req, need(("valu_w", r), 1))
        while req > 0:
            n = min(req, 16)
            out.append(f"  s_nop {n-1}  ; auto")
            pos += n; req -= n; ninserted += 1
        out.append(ln)
        for r in wr:
            last[("any_w", r)] = pos
            for k in ("valu_w", "trans_w", "mfma4_w", "mfma8_w", "salu_w"):
                last.pop((k, r), None)
            last.pop(("mfma_dst", r), None)
        if I.cls == "valu":
            for r in wr:
                last[("valu_w", r)] = pos
                if I.trans: last[("trans_w", r)] = pos
        elif I.cls == "mfma":
            for r in wr:
                last[(f"mfma{I.passes}_w", r)] = pos
                last[("mfma_dst", r)] = (tuple(I.wr), I.passes)
            for r in I.C:
                last[(f"mfma{I.passes}_c", r)] = pos
        elif I.cls == "salu":
            for r in wr:
                last[("salu_w", r)] = pos
        elif I.cls == "vmem" and getattr(I, "wide_store", False):
            for r in I.data:
                last[("wstore", r)] = pos
        pos += I.states()
    if verbose:
        print("inserted nops:", ninserted)
    return out

class Asm:
    def __init__(self):
        self.L = []
    def __call__(self, s):
        for ln in s.split("\n"):
            ln = ln.strip()
            if ln:
                self.L.append("  " + ln if not ln.endswith(":") else ln)
    def label(self, n):
        self.L.append(n + ":")
    def raw(self, s):
        self.L.append(s)

def vr(base, n=4):
    return f"v[{base}:{base+n-1}]" if n > 1 else f"v{base}"
def sr(base, n=2):
    return f"s[{base}:{base+n-1}]" if n > 1 else f"s{base}"

def kernel_header(name):
    return [f".globl {name}", ".p2align 8", f".type {name},@function", f"{name}:"]

def kernel_desc(name, vgpr=256, sgpr=102, accum=None):
    accum = accum or ((vgpr + 3) // 4) * 4
    return [f".amdhsa_kernel {name}",
            f"  .amdhsa_next_free_vgpr {vgpr}",
            f"  .amdhsa_next_free_sgpr {sgpr}",
            f"  .amdhsa_accum_offset {accum}",
            "  .amdhsa_group_segment_fixed_size 0",
            "  .amdhsa_kernarg_size 96",
            "  .amdhsa_user_sgpr_count 2",
            "  .amdhsa_user_sgpr_kernarg_segment_ptr 1",
            "  .amdhsa_system_sgpr_workgroup_id_x 1",
            ".end_amdhsa_kernel"]
```

```python
from asmgen import *
import math
KN = "sequential_preLN__gqa_block_cached__glu_gated_bilinear__decode"

WS_O = 0x0
WS_ML = 0x80000
WS_HACC = 0x90000
WS_HH = 0xA0000
WS_SIZE = 0x100000

C_SCALE = 0.0625 * math.log2(math.e)
def f32hex(x):
    import struct
    return "0x%08x" % struct.unpack("<I", struct.pack("<f", x))[0]

RING0 = 128
NR = 32

def wave_allreduce16(A, v, tmp, op="add"):
    ins = {"add": "v_add_f32", "max": "v_max_f32"}[op]
    for mod in ("quad_perm:[1,0,3,2]", "quad_perm:[2,3,0,1]", "row_half_mirror", "row_mirror"):
        A(f"{ins}_dpp v{v}, v{v}, v{v} {mod} row_mask:0xf bank_mask:0xf")

def rows_allreduce(A, v, tmp, op="add"):
    ins = {"add": "v_add_f32", "max": "v_max_f32"}[op]
    A(f"v_mov_b32 v{tmp}, v{v}")
    A(f"v_permlane16_swap_b32 v{v}, v{tmp}")
    A(f"{ins} v{v}, v{v}, v{tmp}")
    A(f"v_mov_b32 v{tmp}, v{v}")
    A(f"v_permlane32_swap_b32 v{v}, v{tmp}")
    A(f"{ins} v{v}, v{v}, v{tmp}")

def round_bf16(A, v, tmp=None):
    A(f"v_cvt_pk_bf16_f32 v{v}, v{v}, v{v}")
    A(f"v_lshlrev_b32 v{v}, 16, v{v}")

def gen_ka(name, flags="nt"):
    A = Asm()
    for l in kernel_header(name): A.raw(l)
    A(f"""
    s_cmp_ge_u32 s2, 256
    s_cbranch_scc1 {name}_done
    s_load_dwordx8 s[4:11], s[0:1], 0
    s_load_dwordx2 s[12:13], s[0:1], 88
    v_lshrrev_b32 v1, 6, v0
    v_readfirstlane_b32 s3, v1
    v_and_b32 v1, 63, v0
    v_and_b32 v2, 15, v1
    v_lshrrev_b32 v3, 4, v1
    s_and_b32 s43, s2, 7          ; hkv
    s_lshr_b32 s46, s2, 3
    s_and_b32 s46, s46, 7         ; b
    s_lshr_b32 s47, s2, 6         ; split
    s_mov_b32 s41, 0x05040100
    s_mov_b32 s42, 0x07060302
    s_mov_b32 s44, 0xffff0000
    s_mov_b32 s45, {f32hex(C_SCALE)}
    ; K voffset: (i>>2)*512 + (i&3)*64 + g*16
    v_lshrrev_b32 v4, 2, v2
    v_lshlrev_b32 v4, 9, v4
    v_and_b32 v7, 3, v2
    v_lshl_add_u32 v4, v7, 6, v4
    v_lshl_add_u32 v4, v3, 4, v4
    ; V voffset: g*512 + j*16
    v_lshlrev_b32 v5, 9, v3
    v_lshl_add_u32 v5, v2, 4, v5
    s_lshl_b32 s48, s46, 3
    s_add_u32 s48, s48, s43
    s_lshl_b32 s48, s48, 2
    s_add_u32 s48, s48, s47
    s_lshl_b32 s49, s48, 20
    s_lshr_b32 s50, s48, 12
    s_waitcnt lgkmcnt(0)
    s_add_u32 s16, s6, s49
    s_addc_u32 s17, s7, s50
    s_mov_b32 s18, 0x100000
    s_mov_b32 s19, 0x00020000
    s_add_u32 s20, s8, s49
    s_addc_u32 s21, s9, s50
    s_mov_b32 s22, 0x100000
    s_mov_b32 s23, 0x00020000
    s_mov_b32 s32, s12
    s_mov_b32 s33, s13
    s_mov_b32 s34, {WS_SIZE}
    s_mov_b32 s35, 0x00020000
    s_add_u32 s52, s12, {WS_HACC}
    s_addc_u32 s53, s13, 0
    s_mov_b32 s54, {8*448*4}
    s_mov_b32 s55, 0x00020000
    s_lshl_b32 s51, s2, 11
    v_lshlrev_b32 v7, 2, v0
    v_mov_b32 v8, 0
    buffer_store_dword v8, v7, s[52:55], s51 offen sc1
    s_lshl_b32 s36, s3, 14
    s_add_u32 s37, s36, 4096
    s_add_u32 s38, s36, 8192
    s_add_u32 s39, s36, 12288
    """)
    so4 = ["s36", "s37", "s38", "s39"]
    def issue(n):
        ph = n // 128
        m = n % 128
        half = (m // 8) % 2
        r = m % 8
        slot = n % NR
        d = RING0 + slot * 4
        srd = "s[16:19]" if ph == 0 else "s[20:23]"
        vo = "v4" if ph == 0 else "v5"
        A(f"buffer_load_dwordx4 {vr(d)}, {vo}, {srd}, {so4[r>>1]} offen offset:{(r&1)*2048 + half*256} {flags}")
        if m % 16 == 15:
            if n == 127:
                A("s_lshl_b32 s36, s3, 14\ns_add_u32 s37, s36, 4096\ns_add_u32 s38, s36, 8192\ns_add_u32 s39, s36, 12288")
            elif n != 255:
                for s in so4:
                    A(f"s_add_u32 {s}, {s}, 131072")
    A(f"""
    s_cmp_ge_u32 s3, 4
    s_cbranch_scc1 {name}_kpre
    """)
    A(f"""
    ; x SRD
    s_mul_i32 s51, s46, 896
    s_add_u32 s28, s4, s51
    s_addc_u32 s29, s5, 0
    s_mov_b32 s30, 896
    s_mov_b32 s31, 0x00020000
    v_lshlrev_b32 v7, 4, v1
    buffer_load_dwordx4 v[8:11], v7, s[28:31], 0 offen
    s_lshl_b32 s51, s43, 10
    s_add_u32 s24, s10, s51
    s_addc_u32 s25, s11, 0
    s_sub_u32 s26, {448*8192}, s51
    s_mov_b32 s27, 0x00020000
    v_lshlrev_b32 v6, 16, v3
    v_lshl_add_u32 v6, v2, 4, v6
    s_lshl_b32 s51, s3, 8
    v_add_u32 v6, s51, v6
    s_mov_b32 s40, 0
    """)
    def issue_wq(u):
        kb, r = u // 8, u % 8
        slot = (u + 16) % NR
        d = RING0 + slot * 4
        A(f"buffer_load_dwordx4 {vr(d)}, v6, s[24:27], s40 offen")
        if r == 7:
            A(f"s_add_u32 s40, s40, {25*8192}")
        else:
            A("s_add_u32 s40, s40, 8192")
    def issue_u(u):
        if u < 112: issue_wq(u)
        else: issue(u - 112)
    for u in range(32): issue_u(u)
    A(f"""
    s_waitcnt vmcnt(32)
    v_lshlrev_b32 v32, 16, v8
    v_and_b32 v33, s44, v8
    v_lshlrev_b32 v34, 16, v9
    v_and_b32 v35, s44, v9
    v_lshlrev_b32 v36, 16, v10
    v_and_b32 v37, s44, v10
    v_lshlrev_b32 v38, 16, v11
    v_and_b32 v39, s44, v11
    v_add_f32 v40, v32, v33
    v_add_f32 v41, v34, v35
    v_add_f32 v42, v36, v37
    v_add_f32 v43, v38, v39
    v_add_f32 v40, v40, v41
    v_add_f32 v42, v42, v43
    v_add_f32 v40, v40, v42
    """)
    wave_allreduce16(A, 40, 41); rows_allreduce(A, 40, 41)
    A(f"""
    v_mul_f32 v40, {f32hex(1.0/448)}, v40      ; mean (f32)
    v_cmp_gt_u32 vcc, 56, v1
    v_sub_f32 v42, v32, v40
    v_mul_f32 v41, v42, v42
    """)
    for k in range(33, 40):
        A(f"v_sub_f32 v42, v{k}, v40\nv_fmac_f32 v41, v42, v42")
    A("v_cndmask_b32 v41, 0, v41, vcc")
    wave_allreduce16(A, 41, 42); rows_allreduce(A, 41, 42)
    A(f"v_mul_f32 v41, {f32hex(1.0/448)}, v41      ; var")
    round_bf16(A, 40)
    round_bf16(A, 41)
    A(f"v_add_f32 v41, {f32hex(1e-5)}, v41")
    round_bf16(A, 41)
    A("v_sqrt_f32 v41, v41")
    round_bf16(A, 41)
    A("v_rcp_f32 v41, v41")
    for k in range(4):
        a, b = 32 + 2*k, 33 + 2*k
        A(f"""
        v_sub_f32 v{a}, v{a}, v40
        v_sub_f32 v{b}, v{b}, v40
        v_cvt_pk_bf16_f32 v42, v{a}, v{b}
        v_lshlrev_b32 v{a}, 16, v42
        v_and_b32 v{b}, s44, v42
        v_mul_f32 v{a}, v{a}, v41
        v_mul_f32 v{b}, v{b}, v41
        v_cvt_pk_bf16_f32 v{8+k}, v{a}, v{b}
        """)
    A(f"""
    s_lshl_b32 s51, s3, 10
    v_lshl_add_u32 v7, v1, 4, s51
    ds_write_b128 v7, v[8:11]
    v_lshl_add_u32 v7, v3, 4, s51
    s_waitcnt lgkmcnt(0)
    """)
    def Areg(kb): return 32 + 4*kb if kb < 8 else 96 + 4*(kb-8)
    for kb in range(14):
        A(f"ds_read_b128 {vr(Areg(kb))}, v7 offset:{kb*64}")
    A("s_waitcnt lgkmcnt(0)")
    PT = [24, 28, 12]
    def pv_unit(slot0, aop, accbase, first):
        src = [RING0 + ((slot0 + r) % NR) * 4 for r in range(8)]
        for e in range(8):
            t = PT[e % 3]
            sel = "s41" if e % 2 == 0 else "s42"
            for m in range(4):
                A(f"v_perm_b32 v{t+m}, v{src[2*m+1] + e//2}, v{src[2*m] + e//2}, {sel}")
            if e >= 1:
                ep = e - 1
                c = "0" if first else vr(accbase + 4*ep)
                A(f"v_mfma_f32_16x16x32_bf16 {vr(accbase+4*ep)}, {vr(aop)}, {vr(PT[ep%3])}, {c}")
        ep = 7
        c = "0" if first else vr(accbase + 4*ep)
        return f"v_mfma_f32_16x16x32_bf16 {vr(accbase+4*ep)}, {vr(aop)}, {vr(PT[ep%3])}, {c}"
    for kb in range(14):
        A("s_waitcnt vmcnt(24)")
        lastm = pv_unit((kb*8 + 16) % NR, Areg(kb), 64, kb == 0)
        for u in range(kb*8 + 32, kb*8 + 40): issue_u(u)
        A(lastm)
    A("s_nop 7")
    for m in range(4):
        A(f"v_cvt_pk_bf16_f32 v{8+m}, v{64 + 8*m}, v{64 + 8*m + 4}")
    A(f"""
    s_lshl_b32 s51, s3, 8
    v_lshl_add_u32 v7, v2, 4, s51
    ds_write_b128 v7, v[8:11] offset:4096
    s_waitcnt lgkmcnt(0)
    s_branch {name}_join
    """)
    A.label(f"{name}_kpre")
    for n in range(32): issue(n)
    A.label(f"{name}_join")
    A(f"""
    s_nop 7
    s_barrier
    v_and_b32 v7, 1, v2
    v_lshlrev_b32 v7, 9, v7
    v_bfe_u32 v8, v2, 1, 2
    v_lshl_add_u32 v7, v8, 6, v7
    v_lshl_add_u32 v7, v3, 4, v7
    ds_read_b128 v[16:19], v7 offset:4096
    ds_read_b128 v[20:23], v7 offset:4352
    s_waitcnt lgkmcnt(0)
    """)
    T0, S0 = 32, 64
    def waitfor(G):
        issued = min(256, 8*G + 32)
        A(f"s_waitcnt vmcnt({issued - 8*G - 8})")
    for t in range(8):
        for half in range(2):
            G = t*2 + half
            waitfor(G)
            for r in range(8):
                slot = (G*8 + r) % NR
                c = "0" if half == 0 else vr(T0 + 4*r)
                A(f"v_mfma_f32_16x16x32_bf16 {vr(T0+4*r)}, {vr(RING0+slot*4)}, {vr(16+4*half)}, {c}")
            for n in range(G*8 + 32, G*8 + 40):
                if n < 256: issue(n)
        for r in range(8):
            b = T0 + 4*r
            s = S0 + 8*t + r
            A(f"v_add_f32_dpp v{b}, v{b+1}, v{b} row_shl:2 row_mask:0xf bank_mask:0xf")
            A(f"v_add_f32_dpp v{b+2}, v{b+3}, v{b+2} row_shl:2 row_mask:0xf bank_mask:0xf")
        for r in range(8):
            b = T0 + 4*r
            s = S0 + 8*t + r
            A(f"v_add_f32_dpp v{s}, v{b+2}, v{b} row_shl:4 row_mask:0xf bank_mask:0xf")
    for k in range(0, 64, 2):
        a, b = S0 + k, S0 + k + 1
        A(f"v_cvt_pk_bf16_f32 v7, v{a}, v{b}\nv_lshlrev_b32 v{a}, 16, v7\nv_and_b32 v{b}, s44, v7")
    A(f"v_max3_f32 v8, v{S0}, v{S0+1}, v{S0+2}")
    for k in range(3, 63, 2):
        A(f"v_max3_f32 v8, v8, v{S0+k}, v{S0+k+1}")
    A(f"v_max_f32 v8, v8, v{S0+63}")
    rows_allreduce(A, 8, 9, "max")
    A("v_mul_f32 v9, s45, v8")
    A("v_mov_b32 v10, 0\nv_mov_b32 v11, 0")
    for k in range(64):
        A(f"v_fma_f32 v{S0+k}, v{S0+k}, s45, -v9")
    for k in range(64):
        A(f"v_exp_f32 v{S0+k}, v{S0+k}")
    for k in range(0, 64, 2):
        A(f"v_add_f32 v10, v10, v{S0+k}\nv_add_f32 v11, v11, v{S0+k+1}")
        A(f"v_cvt_pk_bf16_f32 v{T0 + k//2}, v{S0+k}, v{S0+k+1}")
    A("v_add_f32 v10, v10, v11")
    rows_allreduce(A, 10, 11, "add")
    A("v_mov_b32 v9, v10")
    PT[:] = [24, 28, 16]
    for t in range(8):
        for half in range(2):
            G = 16 + t*2 + half
            waitfor(G)
            lastm = pv_unit((G*8) % NR, T0 + 4*t, S0 + 32*half, t == 0)
            for n in range(G*8 + 32, G*8 + 40):
                if n < 256: issue(n)
            A(lastm)
    A(f"""
    s_nop 7
    s_lshl_b32 s51, s3, 11
    v_lshl_add_u32 v7, v2, 5, s51       ; wave*2048 + j*32
    s_mov_b64 s[56:57], exec
    s_mov_b64 exec, 0xffff
    """)
    for head in range(2):
        for half in range(2):
            for e in range(0, 8, 2):
                a = S0 + 32*half + 4*e + head
                off = (0x2000 + head*1024 + half*512 + e*4) // 4
                A(f"; placeholder")
                A(f"ds_write_b64 v7, v[{a}:{a}] offset:0") if False else None
                A(f"ds_write_b32 v7, v{a} offset:{0x2000 + head*1024 + half*512 + e*4}")
                A(f"ds_write_b32 v7, v{a+4} offset:{0x2000 + head*1024 + half*512 + e*4 + 4}")
    A(f"""
    s_mov_b64 exec, 3
    s_lshl_b32 s51, s3, 4
    v_lshl_add_u32 v7, v2, 3, s51
    ds_write_b64 v7, v[8:9] offset:{0x1400}
    s_mov_b64 exec, s[56:57]
    s_waitcnt lgkmcnt(0)
    s_barrier
    v_lshrrev_b32 v7, 8, v0
    v_lshlrev_b32 v7, 3, v7             ; head*8
    v_lshlrev_b32 v6, 2, v0             ; t*4 (= head*1024 + d*4)
    """)
    for w in range(8):
        A(f"ds_read_b64 {vr(32+2*w,2)}, v7 offset:{0x1400 + w*16}")
    for w in range(8):
        A(f"ds_read_b32 v{48+w}, v6 offset:{0x2000 + w*2048}")
    A("s_waitcnt lgkmcnt(8)")
    A("v_max3_f32 v8, v32, v34, v36\nv_max3_f32 v8, v8, v38, v40\nv_max3_f32 v8, v8, v42, v44\nv_max_f32 v8, v8, v46")
    for w in range(8):
        A(f"v_sub_f32 v{32+2*w}, v{32+2*w}, v8\nv_mul_f32 v{32+2*w}, s45, v{32+2*w}")
    for w in range(8):
        A(f"v_exp_f32 v{32+2*w}, v{32+2*w}")
    A("v_mul_f32 v9, v32, v33")
    for w in range(1, 8):
        A(f"v_fmac_f32 v9, v{32+2*w}, v{33+2*w}")
    A("s_waitcnt lgkmcnt(0)")
    A("v_mul_f32 v10, v32, v48")
    for w in range(1, 8):
        A(f"v_fmac_f32 v10, v{32+2*w}, v{48+w}")
    A(f"""
    s_lshl_b32 s51, s2, 11
    buffer_store_dword v10, v6, s[32:35], s51 offen sc1
    v_and_b32 v11, 255, v0
    v_cmp_eq_u32 vcc, 0, v11
    s_and_saveexec_b64 s[56:57], vcc
    s_lshl_b32 s51, s2, 4
    s_add_u32 s51, s51, {WS_ML}
    buffer_store_dwordx2 v[8:9], v7, s[32:35], s51 offen sc1
    s_waitcnt vmcnt(0)
    """)
    A.label(f"{name}_done")
    A("s_endpgm")
    return A.L

def the_file(kernels):
    hdr = []
    for (name, lines, grid, block, lds, vgpr) in kernels:
        hdr.append(f"; @launch kernel={name} grid=({grid},1,1) block=({block},1,1) lds={lds}")
    out = hdr + ['.amdgcn_target "amdgcn-amd-amdhsa--gfx950"', ".text"]
    seen = set()
    for (name, lines, grid, block, lds, vgpr) in kernels:
        if name in seen: continue
        seen.add(name)
        out += insert_nops(lines)
    out += ['.section .rodata,"a"', ".p2align 6"]
    seen = set()
    for (name, lines, grid, block, lds, vgpr) in kernels:
        if name in seen: continue
        seen.add(name)
        out += [".p2align 6"] + kernel_desc(name, vgpr)
    return "\n".join(out) + "\n"

if __name__ == "__main__":
    ks = [("attn_kernel", gen_ka("attn_kernel"), 256, 512, 0x6000, 256)]
    open("ka.s", "w").write(the_file(ks))
```

```python
from asmgen import *
from gen_ka import *

def common_prologue(A, name, nwg):
    A(f"""
    s_cmp_ge_u32 s2, {nwg}
    s_cbranch_scc1 {name}_done
    v_lshrrev_b32 v1, 6, v0
    v_readfirstlane_b32 s3, v1
    v_and_b32 v1, 63, v0
    v_and_b32 v2, 15, v1
    v_lshrrev_b32 v3, 4, v1
    s_mov_b32 s41, 0x05040100
    s_mov_b32 s42, 0x07060302
    s_mov_b32 s44, 0xffff0000
    s_mov_b32 s45, {f32hex(C_SCALE)}
    """)

def gen_kb(name):
    A = Asm()
    for l in kernel_header(name): A.raw(l)
    common_prologue(A, name, 224)
    A(f"""
    s_load_dwordx2 s[4:5], s[0:1], 32      ; wo
    s_load_dwordx2 s[12:13], s[0:1], 88    ; ws
    s_and_b32 s46, s2, 31                  ; kc
    s_lshr_b32 s47, s2, 5                  ; cb
    s_waitcnt lgkmcnt(0)
    s_mov_b32 s16, s4
    s_mov_b32 s17, s5
    s_mov_b32 s18, {4096*896}
    s_mov_b32 s19, 0x00020000
    s_mov_b32 s32, s12
    s_mov_b32 s33, s13
    s_mov_b32 s34, {WS_SIZE}
    s_mov_b32 s35, 0x00020000
    s_lshl_b32 s48, s46, 2
    s_add_u32 s48, s48, s3
    s_mul_i32 s48, s48, {32*896}
    s_lshl_b32 s49, s47, 7
    s_add_u32 s48, s48, s49
    s_add_u32 s49, s48, {4*896}
    v_mul_u32_u24 v4, {8*896}, v3
    v_lshl_add_u32 v4, v2, 3, v4
    """)
    for r in range(8):
        so = "s48" if r < 4 else "s49"
        A(f"buffer_load_dwordx2 {vr(16+2*r,2)}, v4, s[16:19], {so} offen offset:{(r&3)*896}")
    A(f"""
    v_and_b32 v5, 7, v2
    v_lshlrev_b32 v6, 14, v5
    v_lshl_add_u32 v6, v3, 5, v6
    s_lshl_b32 s50, s46, 9
    s_lshl_b32 s51, s3, 7
    s_add_u32 s50, s50, s51
    v_lshlrev_b32 v7, 7, v5
    s_lshr_b32 s52, s46, 1
    s_lshl_b32 s52, s52, 3
    s_add_u32 s52, s52, {WS_ML}
    """)
    for s in range(4):
        A(f"buffer_load_dwordx2 {vr(32+2*s,2)}, v7, s[32:35], s52 offen offset:{s*1024} sc1")
    for s in range(4):
        A(f"buffer_load_dwordx4 {vr(40+8*s)}, v6, s[32:35], s50 offen sc1")
        A(f"buffer_load_dwordx4 {vr(44+8*s)}, v6, s[32:35], s50 offen offset:16 sc1")
        if s < 3: A("s_add_u32 s50, s50, 131072")
    A("s_waitcnt vmcnt(12)")
    for e in range(4):
        sel = "s41" if e % 2 == 0 else "s42"
        for m in range(4):
            A(f"v_perm_b32 v{72+4*e+m}, v{16+2*(2*m+1) + e//2}, v{16+2*(2*m) + e//2}, {sel}")
    A("s_waitcnt vmcnt(8)")
    A("v_max3_f32 v8, v32, v34, v36\nv_max_f32 v8, v8, v38")
    for s in range(4):
        A(f"v_sub_f32 v{32+2*s}, v{32+2*s}, v8\nv_mul_f32 v{32+2*s}, s45, v{32+2*s}")
    for s in range(4):
        A(f"v_exp_f32 v{32+2*s}, v{32+2*s}")
    A("v_mul_f32 v9, v32, v33")
    for s in range(1, 4):
        A(f"v_fmac_f32 v9, v{32+2*s}, v{33+2*s}")
    A("v_rcp_f32 v9, v9")
    for s in range(4):
        A(f"v_mul_f32 v{32+2*s}, v{32+2*s}, v9")
    A("s_waitcnt vmcnt(0)")
    for e in range(8):
        A(f"v_mul_f32 v{40+e}, v32, v{40+e}")
        for s in range(1, 4):
            A(f"v_fmac_f32 v{40+e}, v{32+2*s}, v{40+8*s+e}")
    for m in range(4):
        A(f"v_cvt_pk_bf16_f32 v{12+m}, v{40+2*m}, v{41+2*m}")
    for e in range(4):
        A(f"v_mfma_f32_16x16x32_bf16 {vr(88+4*e)}, v[12:15], {vr(72+4*e)}, 0")
    A(f"""
    v_and_b32 v5, 1, v3
    v_lshlrev_b32 v5, 10, v5
    v_lshl_add_u32 v5, v2, 4, v5
    s_lshl_b32 s51, s3, 11
    v_add_u32 v5, s51, v5
    """)
    for r in range(4):
        for e in range(4):
            A(f"ds_write_b32 v5, v{88+4*e+r} offset:{r*256 + e*4}")
    A(f"""
    s_waitcnt lgkmcnt(0)
    s_barrier
    v_lshlrev_b32 v5, 2, v0
    """)
    for h in range(2):
        for w in range(4):
            A(f"ds_read_b32 v{16+4*h+w}, v5 offset:{w*2048 + h*1024}")
    A(f"""
    s_mul_i32 s51, s3, 1792
    s_lshl_b32 s52, s47, 8
    s_add_u32 s51, s51, s52
    s_add_u32 s51, s51, {WS_HACC}
    s_add_u32 s52, s51, {4*1792}
    v_lshlrev_b32 v6, 2, v1
    s_waitcnt lgkmcnt(0)
    v_add_f32 v16, v16, v17
    v_add_f32 v18, v18, v19
    v_add_f32 v20, v20, v21
    v_add_f32 v22, v22, v23
    v_add_f32 v16, v16, v18
    v_add_f32 v20, v20, v22
    buffer_atomic_add_f32 v16, v6, s[32:35], s51 offen
    buffer_atomic_add_f32 v20, v6, s[32:35], s52 offen
    s_waitcnt vmcnt(0)
    """)
    A.label(f"{name}_done")
    A("s_endpgm")
    return A.L

def unpack_h(A, hv, xv, dst, tmp):
    for m in range(4):
        A(f"""
        v_cvt_pk_bf16_f32 v{tmp}, v{hv+2*m}, v{hv+2*m+1}
        v_lshlrev_b32 v{dst+2*m}, 16, v{tmp}
        v_and_b32 v{dst+2*m+1}, s44, v{tmp}
        v_lshlrev_b32 v{tmp}, 16, v{xv+m}
        v_add_f32 v{dst+2*m}, v{dst+2*m}, v{tmp}
        v_and_b32 v{tmp}, s44, v{xv+m}
        v_add_f32 v{dst+2*m+1}, v{dst+2*m+1}, v{tmp}
        v_cvt_pk_bf16_f32 v{tmp}, v{dst+2*m}, v{dst+2*m+1}
        v_lshlrev_b32 v{dst+2*m}, 16, v{tmp}
        v_and_b32 v{dst+2*m+1}, s44, v{tmp}
        """)

def gen_kc(name):
    A = Asm()
    for l in kernel_header(name): A.raw(l)
    common_prologue(A, name, 56)
    A(f"""
    s_load_dwordx2 s[4:5], s[0:1], 0       ; x
    s_load_dwordx4 s[8:11], s[0:1], 48
    s_load_dwordx2 s[12:13], s[0:1], 88    ; ws
    s_waitcnt lgkmcnt(0)
    s_mov_b32 s16, s8
    s_mov_b32 s17, s9
    s_mov_b32 s18, {448*3584}
    s_mov_b32 s19, 0x00020000
    s_mov_b32 s20, s10
    s_mov_b32 s21, s11
    s_mov_b32 s22, {448*3584}
    s_mov_b32 s23, 0x00020000
    s_mov_b32 s28, s4
    s_mov_b32 s29, s5
    s_mov_b32 s30, {8*896}
    s_mov_b32 s31, 0x00020000
    s_mov_b32 s32, s12
    s_mov_b32 s33, s13
    s_mov_b32 s34, {WS_SIZE}
    s_mov_b32 s35, 0x00020000
    v_and_b32 v5, 7, v2
    v_lshrrev_b32 v6, 3, v2
    v_mul_u32_u24 v7, 1792, v5          ; b*1792
    v_lshl_add_u32 v7, v3, 5, v7        ; + g*32
    v_mul_u32_u24 v8, {7*128}, v6
    v_add_u32 v8, v8, v7
    v_lshrrev_b32 v9, 1, v8
    v_lshrrev_b32 v10, 1, v7
    s_mov_b32 s50, {WS_HACC}
    """)
    for k in range(7):
        A(f"buffer_load_dwordx4 {vr(64+8*k)}, v8, s[32:35], s50 offen offset:{k*128} sc1")
        A(f"buffer_load_dwordx4 {vr(68+8*k)}, v8, s[32:35], s50 offen offset:{k*128+16} sc1")
        A(f"buffer_load_dwordx4 {vr(120+4*k)}, v9, s[28:31], 0 offen offset:{k*64}")
    A(f"""
    s_lshl_b32 s51, s3, 8
    s_add_u32 s51, s51, {WS_HACC}
    s_lshl_b32 s52, s3, 7
    """)
    for q in range(2):
        A(f"buffer_load_dwordx4 {vr(148+8*q)}, v7, s[32:35], s51 offen offset:{q*128} sc1")
        A(f"buffer_load_dwordx4 {vr(152+8*q)}, v7, s[32:35], s51 offen offset:{q*128+16} sc1")
        A(f"buffer_load_dwordx4 {vr(164+4*q)}, v10, s[28:31], s52 offen offset:{q*64}")
    A(f"""
    v_mul_u32_u24 v4, {8*3584}, v3
    v_lshl_add_u32 v4, v2, 2, v4
    s_mul_i32 s48, s3, {64*3584}
    s_lshl_b32 s49, s2, 6
    s_add_u32 s48, s48, s49
    """)
    for q in range(2):
        for r in range(8):
            for mat in range(2):
                srd = "s[16:19]" if mat == 0 else "s[20:23]"
                A(f"buffer_load_dword v{176 + (q*2+mat)*8 + r}, v4, {srd}, s48 offen")
            A(f"s_add_u32 s48, s48, {3584 if r < 7 else 25*3584}")
    A("s_waitcnt vmcnt(38)")
    for k in range(7):
        unpack_h(A, 64+8*k, 120+4*k, 64+8*k, 11)
    A("v_add_f32 v12, v64, v65")
    for k in range(66, 120, 2):
        A(f"v_add_f32 v13, v{k}, v{k+1}\nv_add_f32 v12, v12, v13")
    A("v_add_f32_dpp v12, v12, v12 row_ror:8 row_mask:0xf bank_mask:0xf")
    rows_allreduce(A, 12, 13)
    A(f"v_mul_f32 v12, {f32hex(1.0/448)}, v12")
    A("v_sub_f32 v14, v64, v12\nv_mul_f32 v13, v14, v14")
    for k in range(65, 120):
        A(f"v_sub_f32 v14, v{k}, v12\nv_fmac_f32 v13, v14, v14")
    A("v_add_f32_dpp v13, v13, v13 row_ror:8 row_mask:0xf bank_mask:0xf")
    rows_allreduce(A, 13, 14)
    A(f"v_mul_f32 v13, {f32hex(1.0/448)}, v13")
    round_bf16(A, 12); round_bf16(A, 13)
    A(f"v_add_f32 v13, {f32hex(1e-5)}, v13")
    round_bf16(A, 13)
    A("v_sqrt_f32 v13, v13")
    round_bf16(A, 13)
    A("v_rcp_f32 v13, v13")
    A("s_waitcnt vmcnt(32)")
    for q in range(2):
        unpack_h(A, 148+8*q, 164+4*q, 148+8*q, 11)
        for m in range(4):
            a, b = 148+8*q+2*m, 149+8*q+2*m
            A(f"""
            v_sub_f32 v{a}, v{a}, v12
            v_sub_f32 v{b}, v{b}, v12
            v_cvt_pk_bf16_f32 v11, v{a}, v{b}
            v_lshlrev_b32 v{a}, 16, v11
            v_and_b32 v{b}, s44, v11
            v_mul_f32 v{a}, v{a}, v13
            v_mul_f32 v{b}, v{b}, v13
            v_cvt_pk_bf16_f32 v{16+4*q+m}, v{a}, v{b}
            """)
    A("s_waitcnt vmcnt(0)")
    for q in range(2):
        for mat in range(2):
            W = 176 + (q*2+mat)*8
            for e in range(2):
                sel = "s41" if e == 0 else "s42"
                for m in range(4):
                    A(f"v_perm_b32 v{64 + ((q*2+mat)*2+e)*4 + m}, v{W+2*m+1}, v{W+2*m}, {sel}")
    for q in range(2):
        for mat in range(2):
            for e in range(2):
                acc = 24 + (mat*2+e)*4
                c = "0" if q == 0 else vr(acc)
                A(f"v_mfma_f32_16x16x32_bf16 {vr(acc)}, {vr(16+4*q)}, {vr(64 + ((q*2+mat)*2+e)*4)}, {c}")
    A(f"""
    v_and_b32 v5, 1, v3
    v_lshlrev_b32 v5, 9, v5
    v_lshl_add_u32 v5, v2, 3, v5
    s_lshl_b32 s51, s3, 11
    v_add_u32 v5, s51, v5
    """)
    for mat in range(2):
        for r in range(4):
            for e in range(2):
                A(f"ds_write_b32 v5, v{24+(mat*2+e)*4+r} offset:{mat*1024 + r*128 + e*4}")
    A(f"""
    s_waitcnt lgkmcnt(0)
    s_barrier
    s_cmp_ge_u32 s3, 4
    s_cbranch_scc1 {name}_done
    v_lshlrev_b32 v5, 2, v0
    """)
    for mat in range(2):
        for w in range(7):
            A(f"ds_read_b32 v{16+8*mat+w}, v5 offset:{w*2048 + mat*1024}")
    A(f"""
    v_lshrrev_b32 v6, 5, v0
    v_mul_u32_u24 v6, 3584, v6
    v_and_b32 v7, 31, v0
    v_lshl_add_u32 v6, v7, 1, v6
    s_lshl_b32 s51, s2, 6
    s_add_u32 s51, s51, {WS_HH}
    s_waitcnt lgkmcnt(0)
    """)
    for mat in range(2):
        b = 16 + 8*mat
        A(f"v_add_f32 v{b}, v{b}, v{b+1}\nv_add_f32 v{b+2}, v{b+2}, v{b+3}\nv_add_f32 v{b+4}, v{b+4}, v{b+5}\nv_add_f32 v{b}, v{b}, v{b+6}\nv_add_f32 v{b+2}, v{b+2}, v{b+4}\nv_add_f32 v{b}, v{b}, v{b+2}")
    round_bf16(A, 16); round_bf16(A, 24)
    A(f"""
    v_mul_f32 v16, v16, v24
    v_cvt_pk_bf16_f32 v16, v16, v16
    buffer_store_short v16, v6, s[32:35], s51 offen sc1
    s_waitcnt vmcnt(0)
    """)
    A.label(f"{name}_done")
    A("s_endpgm")
    return A.L

def gen_kd(name):
    A = Asm()
    for l in kernel_header(name): A.raw(l)
    common_prologue(A, name, 14)
    A(f"""
    s_load_dwordx2 s[4:5], s[0:1], 0       ; x
    s_load_dwordx4 s[8:11], s[0:1], 64
    s_load_dwordx2 s[12:13], s[0:1], 88    ; ws
    s_waitcnt lgkmcnt(0)
    s_mov_b32 s16, s8
    s_mov_b32 s17, s9
    s_mov_b32 s18, {1792*896}
    s_mov_b32 s19, 0x00020000
    s_mov_b32 s20, s10
    s_mov_b32 s21, s11
    s_mov_b32 s22, {8*896}
    s_mov_b32 s23, 0x00020000
    s_mov_b32 s28, s4
    s_mov_b32 s29, s5
    s_mov_b32 s30, {8*896}
    s_mov_b32 s31, 0x00020000
    s_mov_b32 s32, s12
    s_mov_b32 s33, s13
    s_mov_b32 s34, {WS_SIZE}
    s_mov_b32 s35, 0x00020000
    v_mul_u32_u24 v4, {8*896}, v3
    v_lshl_add_u32 v4, v2, 2, v4
    s_mul_i32 s48, s3, {7*32*896}
    s_lshl_b32 s49, s2, 6
    s_add_u32 s48, s48, s49
    s_add_u32 s49, s48, {4*896}
    """)
    for q in range(7):
        for r in range(8):
            so = "s48" if r < 4 else "s49"
            A(f"buffer_load_dword v{64 + q*8 + r}, v4, s[16:19], {so} offen offset:{(r&3)*896}")
        if q < 6:
            A(f"s_add_u32 s48, s48, {32*896}\ns_add_u32 s49, s49, {32*896}")
    A(f"""
    v_and_b32 v5, 7, v2
    v_mul_u32_u24 v5, 3584, v5
    v_lshl_add_u32 v5, v3, 4, v5
    s_mul_i32 s50, s3, {7*64}
    s_add_u32 s50, s50, {WS_HH}
    """)
    for q in range(7):
        A(f"buffer_load_dwordx4 {vr(32+4*q)}, v5, s[32:35], s50 offen offset:{q*64} sc1")
    A(f"""
    v_lshrrev_b32 v6, 5, v0
    v_and_b32 v6, 7, v6
    v_mul_u32_u24 v6, 896, v6
    v_and_b32 v7, 31, v0
    v_lshl_add_u32 v6, v7, 1, v6
    v_lshlrev_b32 v7, 1, v6
    s_lshl_b32 s51, s2, 6               ; cb*64
    s_lshl_b32 s52, s2, 7
    s_add_u32 s52, s52, {WS_HACC}
    buffer_load_ushort v8, v6, s[28:31], s51 offen
    buffer_load_dword v9, v7, s[32:35], s52 offen sc1
    """)
    A("s_waitcnt vmcnt(2)")
    for q in range(7):
        W = 64 + q*8
        for e in range(2):
            sel = "s41" if e == 0 else "s42"
            for m in range(4):
                A(f"v_perm_b32 v{128 + (q*2+e)*4 + m}, v{W+2*m+1}, v{W+2*m}, {sel}")
    for q in range(7):
        for e in range(2):
            acc = 24 + e*4
            c = "0" if q == 0 else vr(acc)
            A(f"v_mfma_f32_16x16x32_bf16 {vr(acc)}, {vr(32+4*q)}, {vr(128+(q*2+e)*4)}, {c}")
    A(f"""
    v_and_b32 v5, 1, v3
    v_lshlrev_b32 v5, 9, v5
    v_lshl_add_u32 v5, v2, 3, v5
    s_lshl_b32 s53, s3, 10
    v_add_u32 v5, s53, v5
    """)
    for r in range(4):
        for e in range(2):
            A(f"ds_write_b32 v5, v{24+e*4+r} offset:{r*128 + e*4}")
    A(f"""
    s_waitcnt lgkmcnt(0)
    s_barrier
    s_cmp_ge_u32 s3, 4
    s_cbranch_scc1 {name}_done
    v_lshlrev_b32 v5, 2, v0
    """)
    for w in range(8):
        A(f"ds_read_b32 v{16+w}, v5 offset:{w*1024}")
    A(f"""
    s_waitcnt vmcnt(0) lgkmcnt(0)
    v_add_f32 v16, v16, v17
    v_add_f32 v18, v18, v19
    v_add_f32 v20, v20, v21
    v_add_f32 v22, v22, v23
    v_add_f32 v16, v16, v18
    v_add_f32 v20, v20, v22
    v_add_f32 v16, v16, v20
    """)
    round_bf16(A, 16)
    round_bf16(A, 9)
    A("v_lshlrev_b32 v8, 16, v8\nv_add_f32 v8, v8, v9")
    round_bf16(A, 8)
    A(f"""
    v_add_f32 v8, v8, v16
    v_cvt_pk_bf16_f32 v8, v8, v8
    buffer_store_short v8, v6, s[20:23], s51 offen
    s_waitcnt vmcnt(0)
    """)
    A.label(f"{name}_done")
    A("s_endpgm")
    return A.L

if __name__ == "__main__":
    ks = [("attn_kernel", gen_ka("attn_kernel"), 256, 512, 0x6000, 256),
          ("oproj_kernel", gen_kb("oproj_kernel"), 224, 256, 0x2000, 128),
          ("gateup_kernel", gen_kc("gateup_kernel"), 56, 448, 0x3800, 256),
          ("down_kernel", gen_kd("down_kernel"), 14, 512, 0x2000, 256)]
    open("v1.s", "w").write(the_file(ks))
```

```python
from asmgen import *
import math, struct, sys
KN = "sequential_preLN__gqa_block_cached__glu_gated_bilinear__decode"

WS_O = 0x0
WS_ML = 0x80000
WS_FLAG = 0x88000
WS_HACC = 0x90000
WS_HH = 0xA0000
WS_TS = 0xC0000
WS_SIZE = 0x100000

L_Q = 0x1000
L_ST = 0x1400
L_O = 0x2000
L_W = 0x6000
L_WB = 0xA000
LDS_SIZE = 0x16000

C_SCALE = 0.0625 * math.log2(math.e)
def f32hex(x):
    return "0x%08x" % struct.unpack("<I", struct.pack("<f", x))[0]

RING0 = 128
NR = 32

def wave_allreduce16(A, v, op="add"):
    ins = {"add": "v_add_f32", "max": "v_max_f32"}[op]
    for mod in ("quad_perm:[1,0,3,2]", "quad_perm:[2,3,0,1]", "row_half_mirror", "row_mirror"):
        A(f"{ins}_dpp v{v}, v{v}, v{v} {mod} row_mask:0xf bank_mask:0xf")

def rows_allreduce(A, v, tmp, op="add"):
    ins = {"add": "v_add_f32", "max": "v_max_f32"}[op]
    A(f"v_mov_b32 v{tmp}, v{v}")
    A(f"v_permlane16_swap_b32 v{v}, v{tmp}")
    A(f"{ins} v{v}, v{v}, v{tmp}")
    A(f"v_mov_b32 v{tmp}, v{v}")
    A(f"v_permlane32_swap_b32 v{v}, v{tmp}")
    A(f"{ins} v{v}, v{v}, v{tmp}")

def round_bf16(A, v):
    A(f"v_cvt_pk_bf16_f32 v{v}, v{v}, v{v}")
    A(f"v_lshlrev_b32 v{v}, 16, v{v}")

def layernorm8(A, f, out, t0):
    m, vv, t = t0, t0 + 1, t0 + 2
    A(f"""
    v_add_f32 v{m}, v{f}, v{f+1}
    v_add_f32 v{vv}, v{f+2}, v{f+3}
    v_add_f32 v{t}, v{f+4}, v{f+5}
    v_add_f32 v{m}, v{m}, v{vv}
    v_add_f32 v{vv}, v{f+6}, v{f+7}
    v_add_f32 v{t}, v{t}, v{vv}
    v_add_f32 v{m}, v{m}, v{t}
    """)
    wave_allreduce16(A, m); rows_allreduce(A, m, t)
    A(f"""
    v_mul_f32 v{m}, {f32hex(1.0/448)}, v{m}
    v_cmp_gt_u32 vcc, 56, v1
    v_sub_f32 v{t}, v{f}, v{m}
    v_mul_f32 v{vv}, v{t}, v{t}
    """)
    for k in range(1, 8):
        A(f"v_sub_f32 v{t}, v{f+k}, v{m}\nv_fmac_f32 v{vv}, v{t}, v{t}")
    A(f"v_cndmask_b32 v{vv}, 0, v{vv}, vcc")
    wave_allreduce16(A, vv); rows_allreduce(A, vv, t)
    A(f"v_mul_f32 v{vv}, {f32hex(1.0/448)}, v{vv}")
    round_bf16(A, m)
    round_bf16(A, vv)
    A(f"v_add_f32 v{vv}, {f32hex(1e-5)}, v{vv}")
    round_bf16(A, vv)
    A(f"v_sqrt_f32 v{vv}, v{vv}")
    round_bf16(A, vv)
    A(f"v_rcp_f32 v{vv}, v{vv}")
    for k in range(4):
        a, b = f + 2*k, f + 2*k + 1
        A(f"""
        v_sub_f32 v{a}, v{a}, v{m}
        v_sub_f32 v{b}, v{b}, v{m}
        v_cvt_pk_bf16_f32 v{t}, v{a}, v{b}
        v_lshlrev_b32 v{a}, 16, v{t}
        v_and_b32 v{b}, s44, v{t}
        v_mul_f32 v{a}, v{a}, v{vv}
        v_mul_f32 v{b}, v{b}, v{vv}
        v_cvt_pk_bf16_f32 v{out+k}, v{a}, v{b}
        """)

def unpack_h(A, hv, xv, dst, tmp):
    for m in range(4):
        A(f"""
        v_cvt_pk_bf16_f32 v{tmp}, v{hv+2*m}, v{hv+2*m+1}
        v_lshlrev_b32 v{dst+2*m}, 16, v{tmp}
        v_and_b32 v{dst+2*m+1}, s44, v{tmp}
        v_lshlrev_b32 v{tmp}, 16, v{xv+m}
        v_add_f32 v{dst+2*m}, v{dst+2*m}, v{tmp}
        v_and_b32 v{tmp}, s44, v{xv+m}
        v_add_f32 v{dst+2*m+1}, v{dst+2*m+1}, v{tmp}
        v_cvt_pk_bf16_f32 v{tmp}, v{dst+2*m}, v{dst+2*m+1}
        v_lshlrev_b32 v{dst+2*m}, 16, v{tmp}
        v_and_b32 v{dst+2*m+1}, s44, v{tmp}
        """)

def gen(name, flags="nt", ts=False):
    A = Asm()
    tsn = [0]
    def stamp():
        if not ts: return
        i = tsn[0]; tsn[0] += 1
        A(f"""
        s_memrealtime s[90:91]
        s_waitcnt lgkmcnt(0)
        v_mov_b32 v14, s90
        v_mov_b32 v15, s91
        v_mov_b32 v13, {i*8}
        s_mov_b64 s[92:93], exec
        s_mov_b64 exec, 1
        buffer_store_dwordx2 v[14:15], v13, s[32:35], s89 offen
        s_mov_b64 exec, s[92:93]
        """)
    for l in kernel_header(name): A.raw(l)
    A(f"""
    s_cmp_ge_u32 s2, 256
    s_cbranch_scc1 {name}_done
    s_load_dwordx8 s[4:11], s[0:1], 0       ; x K V wq
    s_load_dwordx2 s[60:61], s[0:1], 32     ; wo
    s_load_dwordx8 s[64:71], s[0:1], 48
    s_load_dwordx4 s[12:15], s[0:1], 80
    v_lshrrev_b32 v1, 6, v0
    v_readfirstlane_b32 s3, v1
    v_and_b32 v1, 63, v0
    v_and_b32 v2, 15, v1
    v_lshrrev_b32 v3, 4, v1
    s_and_b32 s43, s2, 7          ; hkv
    s_lshr_b32 s46, s2, 3
    s_and_b32 s46, s46, 7         ; b
    s_lshr_b32 s47, s2, 6         ; split
    s_mov_b32 s41, 0x05040100
    s_mov_b32 s42, 0x07060302
    s_mov_b32 s44, 0xffff0000
    s_mov_b32 s45, {f32hex(C_SCALE)}
    v_lshrrev_b32 v4, 2, v2
    v_lshlrev_b32 v4, 9, v4
    v_and_b32 v7, 3, v2
    v_lshl_add_u32 v4, v7, 6, v4
    v_lshl_add_u32 v4, v3, 4, v4
    v_lshlrev_b32 v5, 9, v3
    v_lshl_add_u32 v5, v2, 4, v5
    s_lshl_b32 s48, s46, 3
    s_add_u32 s48, s48, s43
    s_lshl_b32 s48, s48, 2
    s_add_u32 s48, s48, s47
    s_lshl_b32 s49, s48, 20
    s_lshr_b32 s50, s48, 12
    s_and_b32 s72, s2, 31
    s_lshr_b32 s73, s2, 5
    s_mul_i32 s74, s43, 28
    s_lshr_b32 s75, s2, 3
    s_add_u32 s74, s74, s75
    s_sub_u32 s75, s2, 224        ; c (stage C)
    s_waitcnt lgkmcnt(0)
    s_add_u32 s16, s6, s49
    s_addc_u32 s17, s7, s50
    s_mov_b32 s18, 0x100000
    s_mov_b32 s19, 0x00020000
    s_add_u32 s20, s8, s49
    s_addc_u32 s21, s9, s50
    s_mov_b32 s22, 0x100000
    s_mov_b32 s23, 0x00020000
    s_mov_b32 s32, s14
    s_mov_b32 s33, s15
    s_mov_b32 s34, {WS_SIZE}
    s_mov_b32 s35, 0x00020000
    s_mov_b32 s76, s12
    s_mov_b32 s77, s13
    s_mov_b32 s78, 256
    s_mov_b32 s79, 0x00020000
    s_mov_b32 s28, s4
    s_mov_b32 s29, s5
    s_mov_b32 s30, {8*896}
    s_mov_b32 s31, 0x00020000
    s_lshl_b32 s36, s3, 14
    s_add_u32 s37, s36, 4096
    s_add_u32 s38, s36, 8192
    s_add_u32 s39, s36, 12288
    s_lshl_b32 s89, s2, 3
    s_add_u32 s89, s89, s3
    s_lshl_b32 s89, s89, 7
    s_add_u32 s89, s89, {WS_TS}
    """)
    stamp()
    so4 = ["s36", "s37", "s38", "s39"]
    def issue(n):
        ph = n // 128
        m = n % 128
        half = (m // 8) % 2
        r = m % 8
        slot = n % NR
        d = RING0 + slot * 4
        srd = "s[16:19]" if ph == 0 else "s[20:23]"
        vo = "v4" if ph == 0 else "v5"
        A(f"buffer_load_dwordx4 {vr(d)}, {vo}, {srd}, {so4[r>>1]} offen offset:{(r&1)*2048 + half*256} {flags}")
        if m % 16 == 15:
            if n == 127:
                A("s_lshl_b32 s36, s3, 14\ns_add_u32 s37, s36, 4096\ns_add_u32 s38, s36, 8192\ns_add_u32 s39, s36, 12288")
            elif n != 255:
                for s in so4:
                    A(f"s_add_u32 {s}, {s}, 131072")
    A(f"""
    s_cmp_ge_u32 s3, 4
    s_cbranch_scc1 {name}_kpre
    """)
    A(f"""
    s_mul_i32 s51, s46, 896
    v_lshlrev_b32 v7, 4, v1
    v_min_u32 v7, {55*16}, v7
    buffer_load_dwordx4 v[8:11], v7, s[28:31], s51 offen
    s_lshl_b32 s51, s43, 10
    s_add_u32 s24, s10, s51
    s_addc_u32 s25, s11, 0
    s_sub_u32 s26, {448*8192}, s51
    s_mov_b32 s27, 0x00020000
    v_lshlrev_b32 v6, 16, v3
    v_lshl_add_u32 v6, v2, 4, v6
    s_lshl_b32 s51, s3, 8
    v_add_u32 v6, s51, v6
    s_mov_b32 s40, 0
    """)
    def issue_wq(u):
        kb, r = u // 8, u % 8
        slot = (u + 16) % NR
        d = RING0 + slot * 4
        A(f"buffer_load_dwordx4 {vr(d)}, v6, s[24:27], s40 offen")
        A(f"s_add_u32 s40, s40, {25*8192 if r == 7 else 8192}")
    def issue_u(u):
        if u < 112: issue_wq(u)
        else: issue(u - 112)
    for u in range(32): issue_u(u)
    A(f"""
    s_waitcnt vmcnt(32)
    v_cmp_gt_u32 vcc, 56, v1
    v_cndmask_b32 v8, 0, v8, vcc
    v_cndmask_b32 v9, 0, v9, vcc
    v_cndmask_b32 v10, 0, v10, vcc
    v_cndmask_b32 v11, 0, v11, vcc
    v_lshlrev_b32 v32, 16, v8
    v_and_b32 v33, s44, v8
    v_lshlrev_b32 v34, 16, v9
    v_and_b32 v35, s44, v9
    v_lshlrev_b32 v36, 16, v10
    v_and_b32 v37, s44, v10
    v_lshlrev_b32 v38, 16, v11
    v_and_b32 v39, s44, v11
    """)
    layernorm8(A, 32, 8, 40)
    A(f"""
    s_lshl_b32 s51, s3, 10
    v_lshl_add_u32 v7, v1, 4, s51
    ds_write_b128 v7, v[8:11]
    v_lshl_add_u32 v7, v3, 4, s51
    s_waitcnt lgkmcnt(0)
    """)
    def Areg(kb): return 32 + 4*kb if kb < 8 else 96 + 4*(kb-8)
    for kb in range(14):
        A(f"ds_read_b128 {vr(Areg(kb))}, v7 offset:{kb*64}")
    A("s_waitcnt lgkmcnt(0)")
    PT = [24, 28, 12]
    def pv_unit(slot0, aop, accbase, first):
        src = [RING0 + ((slot0 + r) % NR) * 4 for r in range(8)]
        for e in range(8):
            t = PT[e % 3]
            sel = "s41" if e % 2 == 0 else "s42"
            for m in range(4):
                A(f"v_perm_b32 v{t+m}, v{src[2*m+1] + e//2}, v{src[2*m] + e//2}, {sel}")
            if e >= 1:
                ep = e - 1
                c = "0" if first else vr(accbase + 4*ep)
                A(f"v_mfma_f32_16x16x32_bf16 {vr(accbase+4*ep)}, {vr(aop)}, {vr(PT[ep%3])}, {c}")
        ep = 7
        c = "0" if first else vr(accbase + 4*ep)
        return f"v_mfma_f32_16x16x32_bf16 {vr(accbase+4*ep)}, {vr(aop)}, {vr(PT[ep%3])}, {c}"
    for kb in range(14):
        A("s_waitcnt vmcnt(24)")
        lastm = pv_unit((kb*8 + 16) % NR, Areg(kb), 64, kb == 0)
        for u in range(kb*8 + 32, kb*8 + 40): issue_u(u)
        A(lastm)
    A("s_nop 7")
    for m in range(4):
        A(f"v_cvt_pk_bf16_f32 v{8+m}, v{64 + 8*m}, v{64 + 8*m + 4}")
    A(f"""
    s_lshl_b32 s51, s3, 8
    v_lshl_add_u32 v7, v2, 4, s51
    ds_write_b128 v7, v[8:11] offset:{L_Q}
    s_waitcnt lgkmcnt(0)
    s_branch {name}_join
    """)
    A.label(f"{name}_kpre")
    A(f"""
    s_nop 4
    s_cmp_lg_u32 s3, 4
    s_cbranch_scc1 {name}_noreset
    v_mov_b32 v8, -1
    v_mov_b32 v9, -1
    v_mov_b32 v10, -1
    v_mov_b32 v11, -1
    v_mov_b32 v12, 0
    v_mov_b32 v13, 0
    v_mov_b32 v14, 0
    v_mov_b32 v15, 0
    v_lshlrev_b32 v7, 4, v1
    s_lshl_b32 s51, s2, 11
    buffer_store_dwordx4 v[8:11], v7, s[32:35], s51 offen sc1
    buffer_store_dwordx4 v[8:11], v7, s[32:35], s51 offen offset:1024 sc1
    s_add_u32 s52, s14, {WS_HACC}
    s_addc_u32 s53, s15, 0
    s_mov_b32 s54, {8*448*4}
    s_mov_b32 s55, 0x00020000
    s_lshl_b32 s51, s2, 10
    buffer_store_dwordx4 v[12:15], v7, s[52:55], s51 offen sc1
    s_mov_b64 s[56:57], exec
    s_mov_b64 exec, 1
    s_lshl_b32 s51, s2, 4
    s_add_u32 s51, s51, {WS_ML}
    buffer_store_dwordx4 v[8:11], v7, s[32:35], s51 offen sc1
    s_lshl_b32 s51, s2, 2
    s_add_u32 s51, s51, {WS_FLAG}
    buffer_store_dword v12, v7, s[32:35], s51 offen sc1
    s_mov_b64 exec, 0xff
    v_mul_u32_u24 v7, 3584, v1
    s_lshl_b32 s51, s74, 4
    s_add_u32 s51, s51, {WS_HH}
    s_cmp_ge_u32 s2, 224
    s_cbranch_scc1 {name}_nohh
    buffer_store_dwordx4 v[8:11], v7, s[32:35], s51 offen sc1
    """)
    A.label(f"{name}_nohh")
    A("s_mov_b64 exec, s[56:57]")
    A.label(f"{name}_noreset")
    A(f"""
    s_nop 4
    s_mov_b32 s59, 0x00020000
    s_cmp_ge_u32 s2, 224
    s_cbranch_scc1 {name}_roleC
    s_cmp_ge_u32 s3, 6
    s_cbranch_scc1 {name}_roleB
    s_mov_b32 s56, s60
    s_mov_b32 s57, s61
    s_mov_b32 s58, {4096*896}
    s_sub_u32 s53, s3, 4
    v_lshrrev_b32 v8, 3, v1
    v_mul_u32_u24 v6, {8*896}, v8
    v_and_b32 v9, 7, v1
    v_lshl_add_u32 v6, v9, 4, v6
    s_lshl_b32 s51, s72, 1
    s_add_u32 s51, s51, s53
    s_mul_i32 s51, s51, {64*896}
    s_lshl_b32 s54, s73, 7
    s_add_u32 s51, s51, s54
    s_mov_b32 s52, 896
    ; lds = L_W + (u*2 + (L>>5))*4096 + ((L&7)>>1)*1024 + ((L>>3)&3)*256 + (L&1)*128
    v_lshrrev_b32 v7, 5, v1
    v_lshlrev_b32 v7, 12, v7
    v_lshrrev_b32 v10, 1, v9
    v_lshl_add_u32 v7, v10, 10, v7
    v_and_b32 v10, 3, v8
    v_lshl_add_u32 v7, v10, 8, v7
    v_and_b32 v10, 1, v1
    v_lshl_add_u32 v7, v10, 7, v7
    s_lshl_b32 s54, s53, 13
    s_add_u32 s54, s54, {L_W}
    v_add_u32 v7, s54, v7
    s_branch {name}_unit
    """)
    A.label(f"{name}_roleB")
    A(f"""
    s_cmp_eq_u32 s3, 6
    s_cselect_b32 s56, s64, s66
    s_cselect_b32 s57, s65, s67
    s_mov_b32 s58, {448*3584}
    v_mul_u32_u24 v6, {8*3584}, v1
    s_lshl_b32 s51, s74, 4
    s_mov_b32 s52, 3584
    s_sub_u32 s54, s3, 6
    s_lshl_b32 s54, s54, 7
    s_add_u32 s54, s54, {L_WB}
    v_lshlrev_b32 v7, 8, v1
    v_add_u32 v7, s54, v7
    s_branch {name}_unit
    """)
    A.label(f"{name}_roleC")
    A(f"""
    s_mov_b32 s56, s68
    s_mov_b32 s57, s69
    s_mov_b32 s58, {1792*896}
    s_cmp_ge_u32 s2, 252
    s_cselect_b32 s58, 0, s58
    s_sub_u32 s53, s3, 4
    v_lshrrev_b32 v8, 1, v1
    v_mul_u32_u24 v6, {8*896}, v8
    v_and_b32 v9, 1, v1
    v_lshl_add_u32 v6, v9, 4, v6
    s_mul_i32 s51, s53, {256*896}
    s_lshl_b32 s54, s75, 5
    s_add_u32 s51, s51, s54
    s_mov_b32 s52, 896
    ; lds = L_W + (u*8 + (L>>3))*1024 + ((L>>1)&3)*256 + (L&1)*128 = L_W + u*8192 + L*128
    s_lshl_b32 s54, s53, 13
    s_add_u32 s54, s54, {L_W}
    v_lshlrev_b32 v7, 7, v1
    v_add_u32 v7, s54, v7
    s_add_u32 s54, s51, {4*256*896}
    """)
    for r in range(8):
        A(f"buffer_load_dwordx4 {vr(96+4*r)}, v6, s[56:59], s54 offen\ns_add_u32 s54, s54, s52")
    A.label(f"{name}_unit")
    A("s_nop 4")
    for r in range(8):
        A(f"buffer_load_dwordx4 {vr(64+4*r)}, v6, s[56:59], s51 offen\ns_add_u32 s51, s51, s52")
    for n in range(32): issue(n)
    A(f"""
    s_waitcnt vmcnt(32)
    s_cmp_lg_u32 s3, 4
    s_cbranch_scc1 {name}_nostart
    v_mov_b32 v8, 1
    v_mov_b32 v9, 0
    s_mov_b64 s[54:55], exec
    s_mov_b64 exec, 1
    buffer_atomic_add v8, v9, s[76:79], 0 offen sc1
    s_mov_b64 exec, s[54:55]
    """)
    A.label(f"{name}_nostart")
    def transpose_store(src0, ldsoff):
        for e in range(8):
            t = 32 + 4*e
            sel = "s41" if e % 2 == 0 else "s42"
            for m in range(4):
                A(f"v_perm_b32 v{t+m}, v{src0 + 4*(2*m+1) + e//2}, v{src0 + 4*(2*m) + e//2}, {sel}")
        for e in range(8):
            A(f"ds_write_b128 v7, {vr(32+4*e)} offset:{ldsoff + e*16}")
    transpose_store(64, 0)
    A(f"""
    s_cmp_lt_u32 s2, 224
    s_cbranch_scc1 {name}_unitdone
    s_waitcnt lgkmcnt(0)
    """)
    transpose_store(96, 4*8192)
    A.label(f"{name}_unitdone")
    A("s_waitcnt lgkmcnt(0)")
    A.label(f"{name}_join")
    A(f"""
    s_nop 7
    s_barrier
    v_and_b32 v7, 1, v2
    v_lshlrev_b32 v7, 9, v7
    v_bfe_u32 v8, v2, 1, 2
    v_lshl_add_u32 v7, v8, 6, v7
    v_lshl_add_u32 v7, v3, 4, v7
    ds_read_b128 v[16:19], v7 offset:{L_Q}
    ds_read_b128 v[20:23], v7 offset:{L_Q+256}
    s_waitcnt lgkmcnt(0)
    """)
    stamp()
    T0, S0 = 32, 64
    def waitfor(G):
        issued = min(256, 8*G + 32)
        A(f"s_waitcnt vmcnt({issued - 8*G - 8})")
    for t in range(8):
        for half in range(2):
            G = t*2 + half
            waitfor(G)
            for r in range(8):
                slot = (G*8 + r) % NR
                c = "0" if half == 0 else vr(T0 + 4*r)
                A(f"v_mfma_f32_16x16x32_bf16 {vr(T0+4*r)}, {vr(RING0+slot*4)}, {vr(16+4*half)}, {c}")
            for n in range(G*8 + 32, G*8 + 40):
                if n < 256: issue(n)
        for r in range(8):
            b = T0 + 4*r
            A(f"v_add_f32_dpp v{b}, v{b+1}, v{b} row_shl:2 row_mask:0xf bank_mask:0xf")
            A(f"v_add_f32_dpp v{b+2}, v{b+3}, v{b+2} row_shl:2 row_mask:0xf bank_mask:0xf")
        for r in range(8):
            b = T0 + 4*r
            s = S0 + 8*t + r
            A(f"v_add_f32_dpp v{s}, v{b+2}, v{b} row_shl:4 row_mask:0xf bank_mask:0xf")
    for k in range(0, 64, 2):
        a, b = S0 + k, S0 + k + 1
        A(f"v_cvt_pk_bf16_f32 v7, v{a}, v{b}\nv_lshlrev_b32 v{a}, 16, v7\nv_and_b32 v{b}, s44, v7")
    A(f"v_max3_f32 v8, v{S0}, v{S0+1}, v{S0+2}")
    for k in range(3, 63, 2):
        A(f"v_max3_f32 v8, v8, v{S0+k}, v{S0+k+1}")
    A(f"v_max_f32 v8, v8, v{S0+63}")
    rows_allreduce(A, 8, 9, "max")
    A("v_mul_f32 v9, s45, v8")
    A("v_mov_b32 v10, 0\nv_mov_b32 v11, 0")
    for k in range(64):
        A(f"v_fma_f32 v{S0+k}, v{S0+k}, s45, -v9")
    for k in range(64):
        A(f"v_exp_f32 v{S0+k}, v{S0+k}")
    for k in range(0, 64, 2):
        A(f"v_add_f32 v10, v10, v{S0+k}\nv_add_f32 v11, v11, v{S0+k+1}")
        A(f"v_cvt_pk_bf16_f32 v{T0 + k//2}, v{S0+k}, v{S0+k+1}")
    A("v_add_f32 v10, v10, v11")
    rows_allreduce(A, 10, 11, "add")
    A("v_mov_b32 v9, v10")
    PT[:] = [24, 28, 16]
    for t in range(8):
        for half in range(2):
            G = 16 + t*2 + half
            waitfor(G)
            lastm = pv_unit((G*8) % NR, T0 + 4*t, S0 + 32*half, t == 0)
            for n in range(G*8 + 32, G*8 + 40):
                if n < 256: issue(n)
            A(lastm)
    stamp()
    A(f"""
    v_mov_b32 v12, 0
    buffer_load_dword v20, v12, s[76:79], 0 offen sc1
    s_mul_i32 s51, s3, 896
    v_lshlrev_b32 v12, 4, v1
    v_min_u32 v12, {55*16}, v12
    buffer_load_dwordx4 v[128:131], v12, s[28:31], s51 offen
    s_lshl_b32 s51, s3, 11
    v_lshl_add_u32 v7, v2, 5, s51
    s_mov_b64 s[56:57], exec
    s_mov_b64 exec, 0xffff
    """)
    for head in range(2):
        for half in range(2):
            for e in range(8):
                a = S0 + 32*half + 4*e + head
                A(f"ds_write_b32 v7, v{a} offset:{L_O + head*1024 + half*512 + e*4}")
    A(f"""
    s_mov_b64 exec, 3
    s_lshl_b32 s51, s3, 4
    v_lshl_add_u32 v7, v2, 3, s51
    ds_write_b64 v7, v[8:9] offset:{L_ST}
    s_mov_b64 exec, s[56:57]
    s_waitcnt lgkmcnt(0)
    s_barrier
    v_lshrrev_b32 v7, 8, v0
    v_lshlrev_b32 v7, 3, v7
    v_lshlrev_b32 v6, 2, v0
    """)
    for w in range(8):
        A(f"ds_read_b64 {vr(32+2*w,2)}, v7 offset:{L_ST + w*16}")
    for w in range(8):
        A(f"ds_read_b32 v{48+w}, v6 offset:{L_O + w*2048}")
    A("s_waitcnt lgkmcnt(8)")
    A("v_max3_f32 v8, v32, v34, v36\nv_max3_f32 v8, v8, v38, v40\nv_max3_f32 v8, v8, v42, v44\nv_max_f32 v8, v8, v46")
    for w in range(8):
        A(f"v_sub_f32 v{32+2*w}, v{32+2*w}, v8\nv_mul_f32 v{32+2*w}, s45, v{32+2*w}")
    for w in range(8):
        A(f"v_exp_f32 v{32+2*w}, v{32+2*w}")
    A("v_mul_f32 v9, v32, v33")
    for w in range(1, 8):
        A(f"v_fmac_f32 v9, v{32+2*w}, v{33+2*w}")
    A("s_waitcnt lgkmcnt(0)")
    A("v_mul_f32 v10, v32, v48")
    for w in range(1, 8):
        A(f"v_fmac_f32 v10, v{32+2*w}, v{48+w}")
    A(f"""
    s_lshl_b32 s51, s2, 11
    buffer_store_dword v10, v6, s[32:35], s51 offen sc1
    v_and_b32 v11, 255, v0
    v_cmp_eq_u32 vcc, 0, v11
    s_and_saveexec_b64 s[56:57], vcc
    s_lshl_b32 s51, s2, 4
    s_add_u32 s51, s51, {WS_ML}
    buffer_store_dwordx2 v[8:9], v7, s[32:35], s51 offen sc1
    s_mov_b64 exec, s[56:57]
    """)
    stamp()
    A(f"""
    s_mov_b32 s80, 0x40000
    v_mov_b32 v12, 0
    s_waitcnt vmcnt(2)
    """)
    A.label(f"{name}_stchk")
    A(f"""
    v_readfirstlane_b32 s51, v20
    s_cmp_ge_u32 s51, 256
    s_cbranch_scc1 {name}_stok
    s_cmp_eq_u32 s80, 0
    s_cbranch_scc1 {name}_stok
    s_sub_u32 s80, s80, 1
    s_sleep 4
    buffer_load_dword v20, v12, s[76:79], 0 offen sc1
    s_waitcnt vmcnt(0)
    s_branch {name}_stchk
    """)
    A.label(f"{name}_stok")
    A(f"""
    s_nop 1
    s_cmp_ge_u32 s2, 252
    s_cbranch_scc1 {name}_done
    s_cmp_ge_u32 s2, 224
    s_cbranch_scc1 {name}_stageC
    s_cmp_ge_u32 s3, 4
    s_cbranch_scc1 {name}_A_bar1
    v_and_b32 v5, 7, v2
    v_lshlrev_b32 v6, 14, v5
    v_lshl_add_u32 v6, v3, 5, v6
    s_lshl_b32 s50, s72, 9
    s_lshl_b32 s51, s3, 7
    s_add_u32 s50, s50, s51
    s_add_u32 s81, s50, 131072
    s_add_u32 s82, s50, 262144
    s_add_u32 s83, s50, 393216
    v_lshlrev_b32 v7, 7, v5
    s_lshr_b32 s52, s72, 1
    s_lshl_b32 s52, s52, 3
    s_add_u32 s52, s52, {WS_ML}
    """)
    A.label(f"{name}_A_poll1")
    for s in range(4):
        A(f"buffer_load_dwordx2 {vr(32+2*s,2)}, v7, s[32:35], s52 offen offset:{s*1024} sc1")
    A(f"""
    s_waitcnt vmcnt(0)
    v_max3_u32 v8, v32, v33, v34
    v_max3_u32 v8, v8, v35, v36
    v_max3_u32 v8, v8, v37, v38
    v_max_u32 v8, v8, v39
    v_cmp_eq_u32 vcc, -1, v8
    s_nop 1
    s_cbranch_vccz {name}_A_poll2
    s_cmp_eq_u32 s80, 0
    s_cbranch_scc1 {name}_A_poll2
    s_sub_u32 s80, s80, 1
    s_sleep 2
    s_branch {name}_A_poll1
    """)
    A.label(f"{name}_A_poll2")
    for s, so in enumerate(["s50", "s81", "s82", "s83"]):
        A(f"buffer_load_dwordx4 {vr(40+8*s)}, v6, s[32:35], {so} offen sc1")
        A(f"buffer_load_dwordx4 {vr(44+8*s)}, v6, s[32:35], {so} offen offset:16 sc1")
    A("s_waitcnt vmcnt(0)")
    A("v_max3_u32 v8, v40, v41, v42")
    for k in range(43, 71, 2):
        A(f"v_max3_u32 v8, v8, v{k}, v{k+1}")
    A(f"""
    v_max_u32 v8, v8, v71
    v_cmp_eq_u32 vcc, -1, v8
    s_nop 1
    s_cbranch_vccz {name}_A_go
    s_cmp_eq_u32 s80, 0
    s_cbranch_scc1 {name}_A_go
    s_sub_u32 s80, s80, 1
    s_sleep 1
    s_branch {name}_A_poll2
    """)
    A.label(f"{name}_A_go")
    A("v_max3_f32 v8, v32, v34, v36\nv_max_f32 v8, v8, v38")
    for s in range(4):
        A(f"v_sub_f32 v{32+2*s}, v{32+2*s}, v8\nv_mul_f32 v{32+2*s}, s45, v{32+2*s}")
    for s in range(4):
        A(f"v_exp_f32 v{32+2*s}, v{32+2*s}")
    A("v_mul_f32 v9, v32, v33")
    for s in range(1, 4):
        A(f"v_fmac_f32 v9, v{32+2*s}, v{33+2*s}")
    A("v_rcp_f32 v9, v9")
    for s in range(4):
        A(f"v_mul_f32 v{32+2*s}, v{32+2*s}, v9")
    for e in range(8):
        A(f"v_mul_f32 v{40+e}, v32, v{40+e}")
        for s in range(1, 4):
            A(f"v_fmac_f32 v{40+e}, v{32+2*s}, v{40+8*s+e}")
    for m in range(4):
        A(f"v_cvt_pk_bf16_f32 v{12+m}, v{40+2*m}, v{41+2*m}")
    A(f"""
    s_lshl_b32 s51, s3, 10
    v_lshl_add_u32 v7, v1, 4, s51
    ds_write_b128 v7, v[12:15]
    """)
    for kb in range(4):
        A(f"ds_read_b128 {vr(72+4*kb)}, v7 offset:{L_W + kb*4096}")
    A("s_waitcnt lgkmcnt(0)")
    A.label(f"{name}_A_bar1")
    A(f"""
    s_nop 1
    s_barrier
    s_cmp_ge_u32 s3, 4
    s_cbranch_scc1 {name}_A_bar2
    v_lshlrev_b32 v7, 4, v1
    """)
    for kb in range(4):
        A(f"ds_read_b128 {vr(40+4*kb)}, v7 offset:{kb*1024}")
    A(f"""
    v_mul_u32_u24 v6, {4*1792}, v3
    v_lshl_add_u32 v6, v2, 2, v6
    s_lshl_b32 s51, s73, 8
    s_lshl_b32 s52, s3, 6
    s_add_u32 s51, s51, s52
    s_add_u32 s51, s51, {WS_HACC}
    s_add_u32 s52, s51, {2*1792}
    s_waitcnt lgkmcnt(0)
    """)
    for kb in range(4):
        c = "0" if kb == 0 else "v[56:59]"
        A(f"v_mfma_f32_16x16x32_bf16 v[56:59], {vr(40+4*kb)}, {vr(72+4*kb)}, {c}")
    A(f"""
    s_mov_b64 s[56:57], exec
    s_mov_b32 exec_lo, -1
    s_mov_b32 exec_hi, 0
    buffer_atomic_add_f32 v56, v6, s[32:35], s51 offen
    buffer_atomic_add_f32 v57, v6, s[32:35], s51 offen offset:1792
    buffer_atomic_add_f32 v58, v6, s[32:35], s52 offen
    buffer_atomic_add_f32 v59, v6, s[32:35], s52 offen offset:1792
    s_mov_b64 exec, s[56:57]
    s_waitcnt vmcnt(0)
    """)
    A.label(f"{name}_A_bar2")
    A(f"""
    s_nop 1
    s_barrier
    s_cmp_lg_u32 s3, 0
    s_cbranch_scc1 {name}_B_start
    v_mov_b32 v8, 1
    v_mov_b32 v9, 0
    s_lshl_b32 s51, s2, 2
    s_add_u32 s51, s51, {WS_FLAG}
    s_mov_b64 s[56:57], exec
    s_mov_b64 exec, 1
    buffer_store_dword v8, v9, s[32:35], s51 offen sc1
    s_mov_b64 exec, s[56:57]
    """)
    A.label(f"{name}_B_start")
    stamp()
    A(f"""
    s_nop 1
    v_lshlrev_b32 v7, 4, v1
    v_min_u32 v7, {55*16}, v7
    s_mov_b32 s51, {WS_FLAG}
    v_lshlrev_b32 v6, 1, v7
    s_mul_i32 s52, s3, 1792
    s_add_u32 s52, s52, {WS_HACC}
    """)
    A.label(f"{name}_B_poll")
    A(f"""
    buffer_load_dwordx4 v[32:35], v7, s[32:35], s51 offen sc1
    s_waitcnt vmcnt(0)
    v_min3_u32 v8, v32, v33, v34
    v_min_u32 v8, v8, v35
    v_cmp_eq_u32 vcc, 0, v8
    s_nop 1
    s_cbranch_vccz {name}_B_go
    s_cmp_eq_u32 s80, 0
    s_cbranch_scc1 {name}_B_go
    s_sub_u32 s80, s80, 1
    s_sleep 1
    s_branch {name}_B_poll
    """)
    A.label(f"{name}_B_go")
    A(f"""
    buffer_load_dwordx4 v[32:35], v6, s[32:35], s52 offen sc1
    buffer_load_dwordx4 v[36:39], v6, s[32:35], s52 offen offset:16 sc1
    s_waitcnt vmcnt(0)
    """)
    unpack_h(A, 32, 128, 32, 11)
    A("v_cmp_gt_u32 vcc, 56, v1")
    for k in range(8):
        A(f"v_cndmask_b32 v{32+k}, 0, v{32+k}, vcc")
    layernorm8(A, 32, 12, 40)
    A(f"""
    s_lshl_b32 s51, s3, 10
    v_lshl_add_u32 v7, v1, 4, s51
    ds_write_b128 v7, v[12:15] offset:{L_O}
    s_waitcnt lgkmcnt(0)
    s_barrier
    s_cmp_lg_u32 s3, 0
    s_cbranch_scc1 {name}_done
    v_and_b32 v5, 7, v2
    v_lshlrev_b32 v5, 10, v5
    v_lshl_add_u32 v5, v3, 4, v5
    v_lshlrev_b32 v7, 4, v1
    """)
    for kb in range(14):
        A(f"ds_read_b128 {vr(32+4*kb)}, v5 offset:{L_O + kb*64}")
        A(f"ds_read_b128 {vr(132+4*kb)}, v7 offset:{L_WB + kb*1024}")
    for kb in range(14):
        A(f"s_waitcnt lgkmcnt({min(15, 2*(13-kb))})")
        c = "0" if kb == 0 else "v[24:27]"
        A(f"v_mfma_f32_16x16x32_bf16 v[24:27], {vr(32+4*kb)}, {vr(132+4*kb)}, {c}")
    for r in range(4):
        round_bf16(A, 24 + r)
    for r in range(4):
        A(f"v_mul_f32_dpp v{28+r}, v{24+r}, v{24+r} row_shl:8 row_mask:0xf bank_mask:0xf")
    A(f"""
    v_cvt_pk_bf16_f32 v28, v28, v29
    v_cvt_pk_bf16_f32 v30, v30, v31
    v_lshlrev_b32 v5, 6, v3
    v_lshl_add_u32 v5, v2, 1, v5
    s_mov_b64 s[56:57], exec
    s_mov_b32 exec_lo, 0x00ff00ff
    s_mov_b32 exec_hi, 0
    ds_write_b16 v5, v28
    ds_write_b16_d16_hi v5, v28 offset:16
    ds_write_b16 v5, v30 offset:32
    ds_write_b16_d16_hi v5, v30 offset:48
    s_mov_b64 exec, 0xff
    s_waitcnt lgkmcnt(0)
    ds_read_b128 v[32:35], v7
    v_mul_u32_u24 v6, 3584, v1
    s_lshl_b32 s51, s74, 4
    s_add_u32 s51, s51, {WS_HH}
    s_waitcnt lgkmcnt(0)
    buffer_store_dwordx4 v[32:35], v6, s[32:35], s51 offen sc1
    s_mov_b64 exec, s[56:57]
    """)
    stamp()
    A(f"s_branch {name}_done")
    A.label(f"{name}_stageC")
    A(f"""
    s_nop 1
    v_and_b32 v5, 7, v2
    v_mul_u32_u24 v5, 3584, v5
    v_lshl_add_u32 v5, v3, 4, v5
    s_mul_i32 s50, s3, {7*64}
    s_add_u32 s50, s50, {WS_HH}
    ; B operands
    s_mul_i32 s51, s3, {7*1024}
    v_lshl_add_u32 v7, v1, 4, s51
    """)
    for q in range(7):
        A(f"ds_read_b128 {vr(64+4*q)}, v7 offset:{L_W + q*1024}")
    A(f"""
    v_lshrrev_b32 v6, 4, v0
    v_and_b32 v6, 7, v6
    v_mul_u32_u24 v6, 896, v6
    v_lshl_add_u32 v6, v2, 1, v6
    v_lshlrev_b32 v9, 1, v6
    s_lshl_b32 s53, s75, 5
    s_lshl_b32 s52, s75, 6
    s_add_u32 s52, s52, {WS_HACC}
    buffer_load_ushort v10, v6, s[28:31], s53 offen
    """)
    A.label(f"{name}_C_poll")
    for q in range(7):
        A(f"buffer_load_dwordx4 {vr(32+4*q)}, v5, s[32:35], s50 offen offset:{q*64} sc1")
    A("s_waitcnt vmcnt(0)")
    A("v_max3_u32 v8, v32, v33, v34")
    for k in range(35, 59, 2):
        A(f"v_max3_u32 v8, v8, v{k}, v{k+1}")
    A(f"""
    v_max_u32 v8, v8, v59
    v_cmp_eq_u32 vcc, -1, v8
    s_nop 1
    s_cbranch_vccz {name}_C_go
    s_cmp_eq_u32 s80, 0
    s_cbranch_scc1 {name}_C_go
    s_sub_u32 s80, s80, 1
    s_sleep 1
    s_branch {name}_C_poll
    """)
    A.label(f"{name}_C_go")
    A("buffer_load_dword v11, v9, s[32:35], s52 offen sc1")
    A("s_waitcnt lgkmcnt(0)")
    for q in range(7):
        c = "0" if q == 0 else "v[24:27]"
        A(f"v_mfma_f32_16x16x32_bf16 v[24:27], {vr(32+4*q)}, {vr(64+4*q)}, {c}")
    A(f"""
    v_and_b32 v5, 1, v3
    v_lshlrev_b32 v5, 8, v5
    v_lshl_add_u32 v5, v2, 2, v5
    s_lshl_b32 s51, s3, 9
    v_add_u32 v5, s51, v5
    """)
    for r in range(4):
        A(f"ds_write_b32 v5, v{24+r} offset:{L_O + r*64}")
    A(f"""
    s_waitcnt lgkmcnt(0)
    s_barrier
    s_cmp_ge_u32 s3, 2
    s_cbranch_scc1 {name}_done
    v_lshlrev_b32 v5, 2, v0
    """)
    for w in range(8):
        A(f"ds_read_b32 v{16+w}, v5 offset:{L_O + w*512}")
    A(f"""
    s_mov_b32 s84, s70
    s_mov_b32 s85, s71
    s_mov_b32 s86, {8*896}
    s_mov_b32 s87, 0x00020000
    s_waitcnt vmcnt(0) lgkmcnt(0)
    v_add_f32 v16, v16, v17
    v_add_f32 v18, v18, v19
    v_add_f32 v20, v20, v21
    v_add_f32 v22, v22, v23
    v_add_f32 v16, v16, v18
    v_add_f32 v20, v20, v22
    v_add_f32 v16, v16, v20
    """)
    round_bf16(A, 16)
    round_bf16(A, 11)
    A("v_lshlrev_b32 v10, 16, v10\nv_add_f32 v10, v10, v11")
    round_bf16(A, 10)
    A(f"""
    v_add_f32 v10, v10, v16
    v_cvt_pk_bf16_f32 v10, v10, v10
    buffer_store_short v10, v6, s[84:87], s53 offen
    """)
    stamp()
    A.label(f"{name}_done")
    A("s_endpgm")
    return A.L

def single_file(lines, name, grid, block, lds, vgpr):
    out = [f"; @launch grid=({grid},1,1) block=({block},1,1) lds={lds}",
           '.amdgcn_target "amdgcn-amd-amdhsa--gfx950"', ".text"]
    out += insert_nops(lines)
    out += ['.section .rodata,"a"', ".p2align 6"] + kernel_desc(name, vgpr)
    return "\n".join(out) + "\n"

if __name__ == "__main__":
    name = KN + "_kernel"
    open("v2.s", "w").write(single_file(gen(name), name, 256, 512, LDS_SIZE, 256))
    open("v2ts.s", "w").write(single_file(gen(name, ts=True), name, 256, 512, LDS_SIZE, 256))
```

```python
from asmgen import *
from gen_fused import wave_allreduce16, rows_allreduce, round_bf16, layernorm8, unpack_h, f32hex, C_SCALE, single_file, KN
import math, struct, sys

WS_O = 0x0
WS_F1 = 0x100000
WS_F2 = 0x120000
WS_F3 = 0x108000
WS_ZR = 0x10A000
WS_HACC = 0x110000
WS_HH = 0x118000
WS_GC = 0x130000
WS_EP = 0x138000
WS_TS = 0x140000
WS_Q = 0x180000
WS_SIZE = 0x1C0000
NREP = 4

L_Q = 0x0
L_ST = 0x400
L_CNT = 0x480
L_LN = 0x500
LNS = 1088
L_O = 0x2800
L_W = 0x7400
L_RED = 0x7400 + 0x1C000
LDS_SIZE = L_RED + 0x2000
LNA = 576
HHS = 3648

W_A0, W_Q0, W_B0, W_C0, W_N0 = 0, 112, 176, 204, 218
RING0 = 128

def gen(name, flags="nt", ts=False, THR=4, SUB=2, ROT=4, ENDT=224, notail=False, dry=False, DL=''):
    A = Asm()
    N = name
    def stamp(i):
        if not ts: return
        A(f"""
        s_memrealtime s[90:91]
        s_waitcnt lgkmcnt(0)
        v_mov_b32 v14, s90
        v_mov_b32 v15, s91
        v_mov_b32 v13, {i*8}
        s_mov_b64 s[92:93], exec
        s_mov_b64 exec, 1
        buffer_store_dwordx2 v[14:15], v13, s[32:35], s89 offen
        s_mov_b64 exec, s[92:93]
        """)
    def spin_tail(go, again, sleep):
        A(f"""
        s_cmp_eq_u32 s80, 0
        s_cbranch_scc1 {go}
        s_sub_u32 s80, s80, 1
        s_sleep {sleep}
        s_branch {again}
        """)
    for l in kernel_header(name): A.raw(l)
    A(f"""
    s_cmp_ge_u32 s2, 256
    s_cbranch_scc1 {N}_exit
    s_load_dwordx8 s[4:11], s[0:1], 0       ; x K V wq
    s_load_dwordx2 s[60:61], s[0:1], 32     ; wo
    s_load_dwordx8 s[64:71], s[0:1], 48
    s_load_dwordx4 s[12:15], s[0:1], 80
    v_lshrrev_b32 v1, 6, v0
    v_readfirstlane_b32 s3, v1
    v_and_b32 v1, 63, v0
    v_and_b32 v2, 15, v1
    v_lshrrev_b32 v3, 4, v1
    s_and_b32 s94, s2, 7          ; xcd
    s_lshr_b32 s95, s2, 3         ; j
    s_and_b32 s47, s95, 3         ; split s
    s_lshr_b32 s46, s95, 2        ; b
    s_sub_u32 s43, s94, s47
    s_and_b32 s43, s43, 7         ; hkv
    s_lshl_b32 s48, s46, 3
    s_add_u32 s48, s48, s43       ; G
    s_lshl_b32 s96, s47, 6
    s_add_u32 s96, s96, s48       ; rec
    s_lshl_b32 s97, s47, 3
    s_add_u32 s97, s97, s3        ; widx
    s_mov_b32 s41, 0x05040100
    s_mov_b32 s42, 0x07060302
    s_mov_b32 s44, 0xffff0000
    s_mov_b32 s45, {f32hex(C_SCALE)}
    s_mov_b32 s80, 0x40000
    s_mov_b32 s72, 1
    s_mov_b32 s73, s2
    s_cmp_ge_u32 s2, {W_Q0}
    s_cselect_b32 s72, 2, s72
    s_sub_u32 s51, s2, {W_Q0}
    s_cselect_b32 s73, s73, s51
    s_cmp_ge_u32 s2, {W_Q0}
    s_cselect_b32 s73, s51, s73
    s_sub_u32 s51, s2, {W_B0}
    s_cmp_ge_u32 s2, {W_B0}
    s_cselect_b32 s72, 3, s72
    s_cselect_b32 s73, s51, s73
    s_sub_u32 s51, s2, {W_C0}
    s_cmp_ge_u32 s2, {W_C0}
    s_cselect_b32 s72, 4, s72
    s_cselect_b32 s73, s51, s73
    s_cmp_ge_u32 s2, {W_N0}
    s_cselect_b32 s72, 0, s72
    v_lshrrev_b32 v4, 2, v2
    v_lshlrev_b32 v4, 9, v4
    v_and_b32 v7, 3, v2
    v_lshl_add_u32 v4, v7, 6, v4
    v_lshl_add_u32 v4, v3, 4, v4
    v_lshlrev_b32 v5, 9, v3
    v_lshl_add_u32 v5, v2, 4, v5
    s_lshl_b32 s49, s48, 22
    s_lshr_b32 s50, s48, 10
    s_lshl_b32 s98, s48, 8
    s_add_u32 s98, s98, {WS_GC}
    s_waitcnt lgkmcnt(0)
    s_add_u32 s16, s6, s49
    s_addc_u32 s17, s7, s50
    s_mov_b32 s18, 0x400000
    s_mov_b32 s19, 0x00020000
    s_add_u32 s20, s8, s49
    s_addc_u32 s21, s9, s50
    s_mov_b32 s22, 0x400000
    s_mov_b32 s23, 0x00020000
    s_mov_b32 s32, s14
    s_mov_b32 s33, s15
    s_mov_b32 s34, {WS_SIZE}
    s_mov_b32 s35, 0x00020000
    s_mov_b32 s24, s14
    s_mov_b32 s25, s15
    s_mov_b32 s26, {WS_SIZE}
    s_mov_b32 s27, 0x00020000
    s_mov_b32 s85, 0
    s_mov_b32 s76, s12
    s_mov_b32 s77, s13
    s_mov_b32 s78, 256
    s_mov_b32 s79, 0x00020000
    s_mov_b32 s28, s4
    s_mov_b32 s29, s5
    s_mov_b32 s30, {8*896}
    s_mov_b32 s31, 0x00020000
    s_mov_b32 s59, 0x00020000
    s_mul_i32 s84, s48, {ROT}
    s_add_u32 s36, s97, s84
    s_and_b32 s36, s36, 255
    s_lshl_b32 s36, s36, 14
    s_add_u32 s37, s36, 4096
    s_add_u32 s38, s36, 8192
    s_add_u32 s39, s36, 12288
    s_lshl_b32 s89, s2, 3
    s_add_u32 s89, s89, s3
    s_lshl_b32 s89, s89, 7
    s_add_u32 s89, s89, {WS_TS}
    s_mul_i32 s51, s3, 896
    v_lshlrev_b32 v7, 4, v1
    v_min_u32 v7, {55*16}, v7
    s_cmp_lg_u32 s72, 2
    s_cselect_b32 s51, 0x10000, s51
    buffer_load_dwordx4 v[8:11], v7, s[28:31], s51 offen
    v_mov_b32 v13, 0
    s_mov_b32 s51, {WS_EP}
    buffer_load_dwordx2 v[16:17], v13, s[32:35], s51 offen sc1
    v_mov_b32 v6, 0
    v_mov_b32 v24, 0
    """)
    stamp(0)
    so4 = ["s36", "s37", "s38", "s39"]
    def issue_grp(kv, half, throttle=True, rs=range(8)):
        srd = "s[16:19]" if kv == 0 else "s[20:23]"
        vo = "v4" if kv == 0 else "v5"
        for r in rs:
            if throttle and r % SUB == 0:
                A(f"s_waitcnt vmcnt({THR})")
            d = RING0 + (kv*16 + half*8 + r) * 4
            A(f"buffer_load_dwordx4 {vr(d)}, {vo}, {srd}, {so4[r>>1]} offen offset:{(r&1)*2048 + half*256} {flags}")
    def tag_from_epoch():
        A(f"""
        v_readfirstlane_b32 s62, v16
        v_readfirstlane_b32 s63, v17
        s_add_u32 s62, s62, 1
        s_addc_u32 s63, s63, 0
        s_lshr_b64 s[100:101], s[62:63], 16
        s_lshl_b32 s101, s62, 16
        """)
    def ln1_to_lds():
        A(f"""
        v_cmp_gt_u32 vcc, 56, v1
        v_cndmask_b32 v8, 0, v8, vcc
        v_cndmask_b32 v9, 0, v9, vcc
        v_cndmask_b32 v10, 0, v10, vcc
        v_cndmask_b32 v11, 0, v11, vcc
        v_lshlrev_b32 v32, 16, v8
        v_and_b32 v33, s44, v8
        v_lshlrev_b32 v34, 16, v9
        v_and_b32 v35, s44, v9
        v_lshlrev_b32 v36, 16, v10
        v_and_b32 v37, s44, v10
        v_lshlrev_b32 v38, 16, v11
        v_and_b32 v39, s44, v11
        """)
        layernorm8(A, 32, 8, 40)
        A(f"""
        s_mul_i32 s51, s3, {LNS}
        v_lshl_add_u32 v12, v1, 4, s51
        ds_write_b128 v12, v[8:11] offset:{L_LN}
        """)
    def cnt_inc():
        A(f"""
        v_mov_b32 v12, 1
        v_mov_b32 v13, 0
        s_waitcnt lgkmcnt(0)
        s_mov_b64 exec, 1
        ds_add_u32 v13, v12 offset:{L_CNT}
        s_mov_b64 exec, -1
        """)
    def transpose_store(src0, vaddr, ldsoff=0):
        for e in range(8):
            t = 32 + 4*e
            sel = "s41" if e % 2 == 0 else "s42"
            for m in range(4):
                A(f"v_perm_b32 v{t+m}, v{src0 + 4*(2*m+1) + e//2}, v{src0 + 4*(2*m) + e//2}, {sel}")
        for e in range(8):
            A(f"ds_write_b128 v{vaddr}, {vr(32+4*e)} offset:{ldsoff + e*16}")
        A("s_waitcnt lgkmcnt(0)")
    def unit_loads(dst, so):
        for r in range(8):
            A(f"buffer_load_dwordx4 {vr(dst+4*r)}, v6, s[56:59], {so} offen")
            A(f"s_add_u32 {so}, {so}, s52")
    def q_mfma_publish(tag):
        A(f"""
        v_and_b32 v6, 7, v2
        v_mul_u32_u24 v6, {LNS}, v6
        v_lshl_add_u32 v6, v3, 4, v6
        s_mul_i32 s51, s3, 14336
        s_add_u32 s51, s51, {L_W}
        v_lshl_add_u32 v7, v1, 4, s51
        v_mov_b32 v13, 0
        """)
        A.label(f"{N}_cntpoll{tag}")
        A(f"""
        ds_read_b32 v12, v13 offset:{L_CNT}
        s_waitcnt lgkmcnt(0)
        v_readfirstlane_b32 s51, v12
        s_cmp_ge_u32 s51, 15
        s_cbranch_scc1 {N}_cntgo{tag}
        """)
        spin_tail(f"{N}_cntgo{tag}", f"{N}_cntpoll{tag}", 1)
        A.label(f"{N}_cntgo{tag}")
        stamp(9)
        for hb in range(2):
            for k in range(7):
                kb = hb*7 + k
                A(f"ds_read_b128 {vr(32+4*k)}, v6 offset:{L_LN + kb*64}")
                A(f"ds_read_b128 {vr(64+4*k)}, v7 offset:{kb*1024}")
            for k in range(7):
                kb = hb*7 + k
                A(f"s_waitcnt lgkmcnt({2*(6-k)})")
                c = "0" if kb == 0 else "v[28:31]"
                A(f"v_mfma_f32_16x16x32_bf16 v[28:31], {vr(32+4*k)}, {vr(64+4*k)}, {c}")
        A(f"""
        v_lshlrev_b32 v6, 17, v3
        v_lshl_add_u32 v6, v2, 3, v6
        s_lshl_b32 s51, s73, 2
        s_add_u32 s51, s51, s3
        s_lshl_b32 s51, s51, 7             ; (p*64 + nt*16)*8
        s_add_u32 s51, s51, {WS_Q}
        s_add_u32 s52, s51, 32768
        s_add_u32 s53, s51, 65536
        s_add_u32 s54, s51, 98304
        v_mov_b32 v17, s100
        v_mov_b32 v19, s100
        v_mov_b32 v21, s100
        v_mov_b32 v23, s100
        v_cvt_pk_bf16_f32 v28, v28, v29
        v_cvt_pk_bf16_f32 v30, v30, v31
        v_and_b32 v16, 0xffff, v28
        v_lshrrev_b32 v18, 16, v28
        v_and_b32 v20, 0xffff, v30
        v_lshrrev_b32 v22, 16, v30
        v_or_b32 v16, s101, v16
        v_or_b32 v18, s101, v18
        v_or_b32 v20, s101, v20
        v_or_b32 v22, s101, v22
        s_mov_b32 exec_lo, -1
        s_mov_b32 exec_hi, 0
        buffer_store_dwordx2 v[16:17], v6, s[32:35], s51 offen sc1
        buffer_store_dwordx2 v[18:19], v6, s[32:35], s52 offen sc1
        buffer_store_dwordx2 v[20:21], v6, s[32:35], s53 offen sc1
        buffer_store_dwordx2 v[22:23], v6, s[32:35], s54 offen sc1
        s_mov_b64 exec, -1
        """)
        stamp(10)
    A(f"""
    s_cmp_lg_u32 s3, 0
    s_cbranch_scc1 {N}_w17
    """)
    A(f"""
    v_mov_b32 v14, 0
    v_mov_b32 v15, 0
    ds_write_b64 v13, v[14:15] offset:{L_CNT}
    s_waitcnt lgkmcnt(0)
    s_barrier
    ; resets
    v_mov_b32 v18, -1
    v_mov_b32 v19, -1
    v_mov_b32 v20, -1
    v_mov_b32 v21, -1
    v_mov_b32 v28, 0
    v_mov_b32 v29, 0
    v_mov_b32 v30, 0
    v_mov_b32 v31, 0
    v_mov_b32 v12, 64
    v_lshlrev_b32 v7, 4, v1
    s_cmp_lg_u32 s47, 0
    s_cselect_b32 s51, {WS_SIZE}, s98
    s_mov_b64 exec, 1
    buffer_store_dword v12, v13, s[32:35], s51 offen sc1
    s_mov_b64 exec, -1
    s_cmp_lg_u32 s72, 2
    s_cbranch_scc1 {N}_w0_notq
    s_waitcnt vmcnt(1)
    """)
    tag_from_epoch()
    stamp(8)
    ln1_to_lds()
    cnt_inc()
    q_mfma_publish("a")
    A(f"""
    v_mov_b32 v18, -1
    v_mov_b32 v19, -1
    v_mov_b32 v20, -1
    v_mov_b32 v21, -1
    v_mov_b32 v28, 0
    v_mov_b32 v29, 0
    v_mov_b32 v30, 0
    v_mov_b32 v31, 0
    v_mov_b32 v13, 0
    v_lshlrev_b32 v7, 4, v1
    s_branch {N}_w0_resets
    """)
    A.label(f"{N}_w0_notq")
    A("s_waitcnt vmcnt(1)")
    tag_from_epoch()
    A.label(f"{N}_w0_resets")
    A(f"""
    s_nop 1
    s_cmp_lg_u32 s2, {W_N0}
    s_cbranch_scc1 {N}_nozero
    s_mov_b32 s51, {WS_HACC}
    """)
    for i in range(14):
        if i and i % 4 == 0: A("s_add_u32 s51, s51, 4096")
        A(f"buffer_store_dwordx4 v[28:31], v7, s[32:35], s51 offen offset:{(i%4)*1024} sc1")
    A(f"""
    v_mov_b32 v14, s62
    v_mov_b32 v15, s63
    s_mov_b32 s51, {WS_ZR}
    s_waitcnt vmcnt(0)
    s_mov_b64 exec, 1
    buffer_store_dwordx2 v[14:15], v13, s[32:35], s51 offen sc1
    s_mov_b64 exec, -1
    """)
    A.label(f"{N}_nozero")
    A(f"""
    v_mov_b32 v14, s101
    v_mov_b32 v15, s100
    s_cmp_lg_u32 s47, 0
    s_cbranch_scc1 {N}_nogcr
    s_waitcnt vmcnt(0)
    s_mov_b64 exec, 1
    buffer_store_dwordx2 v[14:15], v13, s[32:35], s98 offen offset:64 sc1
    s_mov_b64 exec, -1
    """)
    A.label(f"{N}_nogcr")
    if dry:
        A(f"""
        s_mov_b32 s85, 1
        s_mov_b32 s26, 0
        s_mov_b32 s86, s80
        s_mov_b32 s80, 0
        s_branch {N}_epi
        """)
    A.label(f"{N}_dryret")
    A(f"""
    s_mov_b32 s85, 0
    s_mov_b32 s26, {WS_SIZE}
    s_mov_b32 s80, 0x40000
    s_mov_b64 exec, -1
    s_waitcnt vmcnt(0) lgkmcnt(0)
    v_lshlrev_b32 v5, 9, v3
    v_lshl_add_u32 v5, v2, 4, v5
    v_lshlrev_b32 v7, 4, v1
    v_mov_b32 v13, 0
    s_lshl_b32 s51, s46, 15
    s_lshl_b32 s52, s43, 12
    s_add_u32 s51, s51, s52
    s_add_u32 s51, s51, {WS_Q}
    """)
    A.label(f"{N}_qpoll")
    for i in range(4):
        A(f"buffer_load_dwordx4 {vr(64+4*i)}, v7, s[32:35], s51 offen offset:{i*1024} sc1")
    A(f"buffer_load_dwordx2 v[80:81], v13, s[32:35], s98 offen offset:64 sc1")
    A("s_waitcnt vmcnt(0)")
    A("v_mov_b32 v12, 0")
    for i in range(9):
        lo, hi = 64 + 2*i, 65 + 2*i
        A(f"""
        v_xor_b32 v15, s101, v{lo}
        v_xor_b32 v14, s100, v{hi}
        v_lshrrev_b32 v15, 16, v15
        v_or3_b32 v12, v12, v15, v14
        """)
    A(f"""
    v_cmp_ne_u32 vcc, 0, v12
    s_nop 1
    s_cbranch_vccz {N}_qgo
    """)
    spin_tail(f"{N}_qgo", f"{N}_qpoll", 1)
    A.label(f"{N}_qgo")
    stamp(11)
    A("v_lshlrev_b32 v6, 2, v1")
    for i in range(4):
        A(f"v_perm_b32 v{16+i}, v{66+4*i}, v{64+4*i}, s41")
    for i in range(4):
        A(f"ds_write_b32 v6, v{16+i} offset:{L_Q + i*256}")
    A(f"""
    v_mov_b32 v12, 1
    v_mov_b32 v13, 0
    s_waitcnt lgkmcnt(0)
    ds_write_b32 v13, v12 offset:{L_CNT+4}
    """)
    issue_grp(0, 0); issue_grp(0, 1); issue_grp(1, 0); issue_grp(1, 1)
    A(f"s_branch {N}_join")
    A.label(f"{N}_w17")
    A(f"""
    s_barrier
    s_sub_u32 s53, s3, 1
    s_cmp_eq_u32 s72, 2
    s_cbranch_scc1 {N}_rQ
    s_cmp_eq_u32 s72, 3
    s_cbranch_scc1 {N}_rB
    s_cmp_eq_u32 s72, 4
    s_cbranch_scc1 {N}_rC
    s_cmp_lg_u32 s72, 1
    s_cbranch_scc1 {N}_fill0
    s_cmp_lt_u32 s3, 4
    s_cbranch_scc1 {N}_fill0
    s_mov_b32 s56, s60
    s_mov_b32 s57, s61
    s_mov_b32 s58, {4096*896}
    s_sub_u32 s53, s3, 4
    v_lshrrev_b32 v12, 3, v1
    v_mul_u32_u24 v6, {8*896}, v12
    v_and_b32 v13, 7, v1
    v_lshl_add_u32 v6, v13, 4, v6
    s_and_b32 s51, s73, 15
    s_lshl_b32 s51, s51, 2
    s_add_u32 s51, s51, s53
    s_mul_i32 s51, s51, {64*896}
    s_lshr_b32 s54, s73, 4
    s_lshl_b32 s54, s54, 7
    s_add_u32 s51, s51, s54
    s_mov_b32 s52, 896
    v_lshrrev_b32 v24, 5, v1
    v_lshlrev_b32 v24, 12, v24
    v_lshrrev_b32 v14, 1, v13
    v_lshl_add_u32 v24, v14, 10, v24
    v_and_b32 v14, 3, v12
    v_lshl_add_u32 v24, v14, 8, v24
    v_and_b32 v14, 1, v1
    v_lshl_add_u32 v24, v14, 7, v24
    s_lshl_b32 s54, s53, 13
    s_add_u32 s54, s54, {L_W}
    v_add_u32 v24, s54, v24
    """)
    unit_loads(64, "s51")
    issue_grp(0, 0, throttle=False, rs=range(4))
    A("s_waitcnt vmcnt(4)")
    transpose_store(64, 24)
    A(f"s_branch {N}_fill4")
    A.label(f"{N}_rQ")
    A(f"""
    s_mov_b32 s56, s10
    s_mov_b32 s57, s11
    s_mov_b32 s58, {448*8192}
    v_lshrrev_b32 v12, 3, v1
    v_lshlrev_b32 v6, 16, v12
    v_and_b32 v13, 7, v1
    v_lshl_add_u32 v6, v13, 4, v6
    s_lshl_b32 s51, s53, 19
    s_lshl_b32 s54, s73, 7
    s_add_u32 s51, s51, s54
    s_mov_b32 s52, 8192
    v_lshrrev_b32 v14, 1, v13
    v_mul_u32_u24 v24, 14336, v14
    v_lshl_add_u32 v24, v12, 8, v24
    v_and_b32 v14, 1, v1
    v_lshl_add_u32 v24, v14, 7, v24
    s_lshl_b32 s54, s53, 11
    s_add_u32 s54, s54, {L_W}
    v_add_u32 v24, s54, v24
    """)
    unit_loads(64, "s51")
    issue_grp(0, 0, throttle=False, rs=range(4))
    A("s_waitcnt vmcnt(12)")
    tag_from_epoch()
    stamp(8)
    ln1_to_lds()
    cnt_inc()
    A(f"s_waitcnt vmcnt({5 if ts else 4})")
    transpose_store(64, 24)
    cnt_inc()
    A(f"""
    s_cmp_ge_u32 s3, 4
    s_cbranch_scc1 {N}_fill4
    """)
    q_mfma_publish("b")
    A(f"s_branch {N}_fill4")
    A.label(f"{N}_rB")
    A(f"""
    s_mov_b32 s56, s64
    s_mov_b32 s57, s65
    s_mov_b32 s58, {448*3584}
    v_lshrrev_b32 v12, 3, v1
    v_mul_u32_u24 v6, {8*3584}, v12
    v_and_b32 v13, 7, v1
    v_lshl_add_u32 v6, v13, 4, v6
    s_mul_i32 s51, s53, {64*3584}
    s_lshl_b32 s54, s73, 7
    s_add_u32 s51, s51, s54
    s_mov_b32 s40, s51
    s_mov_b32 s52, 3584
    v_mul_u32_u24 v24, 14336, v13
    v_lshl_add_u32 v24, v12, 8, v24
    s_lshl_b32 s54, s53, 11
    s_add_u32 s54, s54, {L_W}
    v_add_u32 v24, s54, v24
    """)
    unit_loads(64, "s51")
    A("s_mov_b32 s56, s66\ns_mov_b32 s57, s67")
    unit_loads(96, "s40")
    issue_grp(0, 0, throttle=False, rs=range(4))
    A("s_waitcnt vmcnt(12)")
    transpose_store(64, 24, 0)
    A("s_waitcnt vmcnt(4)")
    transpose_store(96, 24, 128)
    A(f"s_branch {N}_fill4")
    A.label(f"{N}_rC")
    A(f"""
    s_mov_b32 s56, s68
    s_mov_b32 s57, s69
    s_mov_b32 s58, {1792*896}
    v_lshrrev_b32 v12, 2, v1
    v_mul_u32_u24 v6, {8*896}, v12
    v_and_b32 v13, 3, v1
    v_lshl_add_u32 v6, v13, 4, v6
    s_mul_i32 s51, s53, {256*896}
    s_lshl_b32 s54, s73, 6
    s_add_u32 s51, s51, s54
    s_add_u32 s40, s51, {128*896}
    s_mov_b32 s52, 896
    v_lshlrev_b32 v24, 11, v3
    v_lshrrev_b32 v14, 1, v13
    v_lshl_add_u32 v24, v14, 10, v24
    v_and_b32 v14, 3, v12
    v_lshl_add_u32 v24, v14, 8, v24
    v_and_b32 v14, 1, v1
    v_lshl_add_u32 v24, v14, 7, v24
    s_lshl_b32 s54, s53, 14
    s_add_u32 s54, s54, {L_W}
    v_add_u32 v24, s54, v24
    """)
    unit_loads(64, "s51")
    unit_loads(96, "s40")
    issue_grp(0, 0, throttle=False, rs=range(4))
    A("s_waitcnt vmcnt(12)")
    transpose_store(64, 24, 0)
    A("s_waitcnt vmcnt(4)")
    transpose_store(96, 24, 8192)
    A(f"s_branch {N}_fill4")
    A.label(f"{N}_fill0")
    A("s_nop 1")
    issue_grp(0, 0, throttle=False, rs=range(4))
    A.label(f"{N}_fill4")
    A("s_nop 1")
    issue_grp(0, 0, rs=range(4, 8))
    issue_grp(0, 1); issue_grp(1, 0); issue_grp(1, 1)
    A("v_mov_b32 v13, 0")
    A.label(f"{N}_qwait")
    A(f"""
    ds_read_b32 v12, v13 offset:{L_CNT+4}
    s_waitcnt lgkmcnt(0)
    v_readfirstlane_b32 s51, v12
    s_cmp_eq_u32 s51, 1
    s_cbranch_scc1 {N}_join
    """)
    spin_tail(f"{N}_join", f"{N}_qwait", 2)
    A.label(f"{N}_join")
    T0, O0 = 32, 64
    A(f"""
    s_nop 7
    v_and_b32 v7, 1, v2
    v_lshlrev_b32 v7, 9, v7
    v_bfe_u32 v8, v2, 1, 2
    v_lshl_add_u32 v7, v8, 6, v7
    v_lshl_add_u32 v7, v3, 4, v7
    s_waitcnt lgkmcnt(0)
    ds_read_b128 v[16:19], v7 offset:{L_Q}
    ds_read_b128 v[20:23], v7 offset:{L_Q+256}
    v_mov_b32 v8, 0xff7fffff
    v_mov_b32 v9, 0
    s_add_u32 s51, s97, 32
    v_mov_b32 v10, s51
    v_mov_b32 v11, 0
    """)
    for k in range(64):
        A(f"v_mov_b32 v{O0+k}, 0")
    A("s_waitcnt lgkmcnt(0)")
    stamp(1)
    PT = [24, 28, 32]
    Sr = [T0 + 4*r + 1 for r in range(8)]
    def pv_unit(slot0, aop, accbase):
        src = [RING0 + (slot0 + r) * 4 for r in range(8)]
        for e in range(8):
            t = PT[e % 3]
            sel = "s41" if e % 2 == 0 else "s42"
            for m in range(4):
                A(f"v_perm_b32 v{t+m}, v{src[2*m+1] + e//2}, v{src[2*m] + e//2}, {sel}")
            if e >= 1:
                ep = e - 1
                A(f"v_mfma_f32_16x16x32_bf16 {vr(accbase+4*ep)}, {vr(aop)}, {vr(PT[ep%3])}, {vr(accbase+4*ep)}")
        ep = 7
        A(f"v_mfma_f32_16x16x32_bf16 {vr(accbase+4*ep)}, {vr(aop)}, {vr(PT[ep%3])}, {vr(accbase+4*ep)}")
    def body(tag, throttle):
        for r in range(8):
            A(f"v_mfma_f32_16x16x32_bf16 {vr(T0+4*r)}, {vr(RING0+r*4)}, v[16:19], 0")
        A(f"""
        s_add_u32 s36, s99, s84
        s_and_b32 s36, s36, 255
        s_cmp_lt_u32 s99, 256
        s_cselect_b32 s36, s36, 256
        s_lshl_b32 s36, s36, 14
        s_add_u32 s37, s36, 4096
        s_add_u32 s38, s36, 8192
        s_add_u32 s39, s36, 12288
        """)
        issue_grp(0, 0, throttle)
        for r in range(8):
            A(f"v_mfma_f32_16x16x32_bf16 {vr(T0+4*r)}, {vr(RING0+(8+r)*4)}, v[20:23], {vr(T0+4*r)}")
        issue_grp(0, 1, throttle)
        for r in range(8):
            b = T0 + 4*r
            A(f"v_add_f32_dpp v{b}, v{b+1}, v{b} row_shl:2 row_mask:0xf bank_mask:0xf")
            A(f"v_add_f32_dpp v{b+2}, v{b+3}, v{b+2} row_shl:2 row_mask:0xf bank_mask:0xf")
        for r in range(8):
            b = T0 + 4*r
            A(f"v_add_f32_dpp v{b+1}, v{b+2}, v{b} row_shl:4 row_mask:0xf bank_mask:0xf")
        for k in range(0, 8, 2):
            a, b = Sr[k], Sr[k+1]
            A(f"v_cvt_pk_bf16_f32 v7, v{a}, v{b}\nv_lshlrev_b32 v{a}, 16, v7\nv_and_b32 v{b}, s44, v7")
        A(f"""
        v_max3_f32 v6, v{Sr[0]}, v{Sr[1]}, v{Sr[2]}
        v_max3_f32 v6, v6, v{Sr[3]}, v{Sr[4]}
        v_max3_f32 v6, v6, v{Sr[5]}, v{Sr[6]}
        v_max3_f32 v6, v6, v{Sr[7]}, v8
        """)
        rows_allreduce(A, 6, 7, "max")
        A(f"""
        v_cmp_gt_f32 vcc, v6, v8
        v_sub_f32 v7, v8, v6
        v_mul_f32 v7, s45, v7
        v_exp_f32 v7, v7
        v_mov_b32 v8, v6
        v_mul_f32 v6, s45, v6
        s_and_b32 s51, vcc_lo, 3
        s_cbranch_scc0 {N}_norescale{tag}
        v_mul_f32 v9, v9, v7
        v_readlane_b32 s51, v7, 0
        v_readlane_b32 s52, v7, 1
        s_nop 1
        """)
        for k in range(16):
            A(f"v_mul_f32 v{O0+4*k}, s51, v{O0+4*k}\nv_mul_f32 v{O0+4*k+1}, s52, v{O0+4*k+1}")
        A.label(f"{N}_norescale{tag}")
        for k in range(8):
            A(f"v_fma_f32 v{Sr[k]}, v{Sr[k]}, s45, -v6")
        for k in range(8):
            A(f"v_exp_f32 v{Sr[k]}, v{Sr[k]}")
        for k in range(0, 8, 2):
            A(f"v_add_f32 v7, v{Sr[k]}, v{Sr[k+1]}\nv_cvt_pk_bf16_f32 v{12+k//2}, v{Sr[k]}, v{Sr[k+1]}\nv_add_f32 v9, v9, v7")
        for half in range(2):
            if half == 1:
                A("s_waitcnt vmcnt(24)")
            pv_unit(16 + half*8, 12, O0 + 32*half)
            if half == 1:
                A(f"""
                v_mov_b32 v10, 1
                s_mov_b64 exec, 1
                buffer_atomic_add v10, v11, s[32:35], s98 offen sc0 sc1
                s_mov_b64 exec, -1
                """)
            issue_grp(1, half, throttle)
    A.label(f"{N}_loop")
    A(f"""
    s_waitcnt vmcnt(8)
    v_readfirstlane_b32 s99, v10
    s_cmp_ge_u32 s99, {ENDT}
    s_cbranch_scc1 {N}_loopB
    """)
    body("A", True)
    A(f"s_nop 7\ns_branch {N}_loop")
    A.label(f"{N}_loopB")
    A("s_nop 1")
    body("B", False)
    A(f"""
    s_cmp_lt_u32 s99, 256
    s_nop 7
    s_cbranch_scc1 {N}_loop
    """)
    stamp(2)
    A.label(f"{N}_epi")
    rows_allreduce(A, 9, 7, "add")
    A(f"""
    s_waitcnt vmcnt(0)
    v_mov_b32 v12, 0
    s_mov_b32 s51, {WS_ZR}
    buffer_load_dwordx2 v[20:21], v12, s[32:35], s51 offen sc1
    s_mul_i32 s51, s3, 896
    v_lshlrev_b32 v12, 4, v1
    v_min_u32 v12, {55*16}, v12
    buffer_load_dwordx4 v[128:131], v12, s[28:31], s51 offen
    s_lshl_b32 s51, s3, 11
    v_lshl_add_u32 v7, v2, 5, s51
    s_mov_b64 exec, 0xffff
    """)
    for head in range(2):
        for half in range(2):
            for e in range(8):
                a = O0 + 32*half + 4*e + head
                A(f"ds_write_b32 v7, v{a} offset:{L_O + head*1024 + half*512 + e*4}")
    A(f"""
    s_mov_b64 exec, 3
    s_lshl_b32 s51, s3, 4
    v_lshl_add_u32 v7, v2, 3, s51
    ds_write_b64 v7, v[8:9] offset:{L_ST}
    s_mov_b64 exec, -1
    s_waitcnt lgkmcnt(0)
    s_cmp_eq_u32 s85, 1
    s_cbranch_scc1 {N}_nb1
    s_barrier
    {N}_nb1:
    v_lshrrev_b32 v7, 8, v0
    v_lshlrev_b32 v7, 3, v7
    v_lshlrev_b32 v6, 2, v0
    """)
    for w in range(8):
        A(f"ds_read_b64 {vr(32+2*w,2)}, v7 offset:{L_ST + w*16}")
    for w in range(8):
        A(f"ds_read_b32 v{48+w}, v6 offset:{L_O + w*2048}")
    A(f"""
    s_waitcnt lgkmcnt(8)
    """)
    A("v_max3_f32 v8, v32, v34, v36\nv_max3_f32 v8, v8, v38, v40\nv_max3_f32 v8, v8, v42, v44\nv_max_f32 v8, v8, v46")
    for w in range(8):
        A(f"v_sub_f32 v{32+2*w}, v{32+2*w}, v8\nv_mul_f32 v{32+2*w}, s45, v{32+2*w}")
    for w in range(8):
        A(f"v_exp_f32 v{32+2*w}, v{32+2*w}")
    A("v_mul_f32 v9, v32, v33")
    for w in range(1, 8):
        A(f"v_fmac_f32 v9, v{32+2*w}, v{33+2*w}")
    A("s_waitcnt lgkmcnt(0)")
    A("v_mul_f32 v10, v32, v48")
    for w in range(1, 8):
        A(f"v_fmac_f32 v10, v{32+2*w}, v{48+w}")
    A(f"""
    s_lshl_b32 s51, s96, 12
    buffer_store_dword v10, v6, s[24:27], s51 offen sc1
    s_and_b32 s52, s3, 3
    s_cmp_lg_u32 s52, 0
    s_cselect_b32 s51, {WS_SIZE}, s51
    s_mov_b64 exec, 1
    buffer_store_dwordx2 v[8:9], v7, s[24:27], s51 offen offset:2048 sc1
    s_mov_b64 exec, -1
    """)
    A(f"""
    s_waitcnt vmcnt(0)
    s_cmp_eq_u32 s85, 1
    s_cbranch_scc1 {N}_nb2
    s_barrier
    {N}_nb2:
    s_cmp_lg_u32 s3, 0
    s_cbranch_scc1 {N}_f1done
    v_mov_b32 v12, s62
    v_mov_b32 v13, s63
    v_mov_b32 v14, 0
    s_lshl_b32 s51, s43, 5
    s_lshl_b32 s52, s47, 3
    s_add_u32 s51, s51, s52
    s_add_u32 s51, s51, s46
    s_lshl_b32 s51, s51, 7
    s_add_u32 s51, s51, {WS_F1}
    s_mov_b64 exec, 1
    buffer_store_dwordx2 v[12:13], v14, s[24:27], s51 offen sc1
    s_mov_b64 exec, -1
    """)
    A.label(f"{N}_f1done")
    stamp(3)
    if notail: A(f"s_branch {N}_done")
    def flag_poll(tag, base_code, nfl, extra=""):
        A(f"""
        s_cmp_lg_u32 s3, 0
        s_cbranch_scc1 {N}_{tag}_go
        {base_code}
        """)
        A(f"v_lshlrev_b32 v22, 7, v1\nv_min_u32 v22, {(min(nfl,64)-1)*128}, v22")
        if nfl > 64:
            A(f"v_lshlrev_b32 v23, 7, v1\nv_add_u32 v23, 8192, v23\nv_min_u32 v23, {(nfl-1)*128}, v23")
        A.label(f"{N}_{tag}_poll")
        if nfl <= 64:
            A(f"""
            buffer_load_dwordx2 v[32:33], v22, s[32:35], s51 offen sc1
            s_waitcnt vmcnt(0)
            v_xor_b32 v32, s62, v32
            v_xor_b32 v33, s63, v33
            v_or_b32 v8, v32, v33
            """)
        else:
            A(f"""
            buffer_load_dwordx2 v[32:33], v22, s[32:35], s51 offen sc1
            buffer_load_dwordx2 v[34:35], v23, s[32:35], s51 offen sc1
            s_waitcnt vmcnt(0)
            v_xor_b32 v32, s62, v32
            v_xor_b32 v33, s63, v33
            v_xor_b32 v34, s62, v34
            v_xor_b32 v35, s63, v35
            v_or3_b32 v8, v32, v33, v34
            v_or_b32 v8, v8, v35
            """)
        A(f"""
        v_cmp_ne_u32 vcc, 0, v8
        s_nop 1
        s_cbranch_vccz {N}_{tag}_go
        """)
        spin_tail(f"{N}_{tag}_go", f"{N}_{tag}_poll", 1)
        A.label(f"{N}_{tag}_go")
        A(f"s_nop 1\ns_cmp_eq_u32 s85, 1\ns_cbranch_scc1 {N}_{tag}_nb\ns_barrier\n{N}_{tag}_nb:")
    A(f"""
    s_cmp_eq_u32 s72, 0
    s_cbranch_scc1 {N}_done
    s_cmp_eq_u32 s72, 2
    s_cbranch_scc1 {N}_done
    s_cmp_eq_u32 s72, 3
    s_cbranch_scc1 {N}_stageB
    s_cmp_eq_u32 s72, 4
    s_cbranch_scc1 {N}_stageC
    s_cmp_lg_u32 s3, 0
    s_cbranch_scc1 {N}_stok
    v_mov_b32 v12, 0
    s_mov_b32 s52, {WS_ZR}
    """)
    A.label(f"{N}_stchk")
    A(f"""
    v_readfirstlane_b32 s50, v20
    v_readfirstlane_b32 s51, v21
    s_cmp_eq_u64 s[50:51], s[62:63]
    s_cbranch_scc1 {N}_stok
    s_cmp_eq_u32 s80, 0
    s_cbranch_scc1 {N}_stok
    s_sub_u32 s80, s80, 1
    s_sleep 16
    buffer_load_dwordx2 v[20:21], v12, s[32:35], s52 offen sc1
    s_waitcnt vmcnt(0)
    s_branch {N}_stchk
    """)
    A.label(f"{N}_stok")
    A(f"""
    s_nop 1
    v_lshlrev_b32 v6, 4, v1
    v_mov_b32 v7, 0
    s_and_b32 s50, s73, 15
    s_lshr_b32 s51, s50, 1
    s_lshl_b32 s52, s3, 3
    s_add_u32 s51, s51, s52          ; b*8 + hkv
    s_lshl_b32 s51, s51, 12
    s_and_b32 s50, s50, 1
    s_lshl_b32 s52, s50, 3
    s_add_u32 s74, s51, s52
    s_lshl_b32 s50, s50, 10
    s_add_u32 s50, s50, s51          ; O soffset
    s_add_u32 s81, s50, 0x40000
    s_add_u32 s82, s50, 0x80000
    s_add_u32 s83, s50, 0xC0000
    s_add_u32 s75, s74, 0x40000
    s_add_u32 s86, s74, 0x80000
    s_add_u32 s87, s74, 0xC0000
    s_lshl_b32 s51, s3, 10
    v_lshl_add_u32 v12, v1, 4, s51
    s_cmp_ge_u32 s3, 4
    s_cbranch_scc1 {N}_A_poll
    """)
    for kb in range(8):
        A(f"ds_read_b128 {vr(136+4*kb)}, v12 offset:{L_W + kb*4096}")
    A.label(f"{N}_A_poll")
    A("s_nop 1")
    flag_poll("A1", f"s_and_b32 s51, s73, 15\ns_lshr_b32 s51, s51, 1\ns_lshl_b32 s51, s51, 12\ns_add_u32 s51, s51, {WS_F1}", 32)
    stamp(7)
    for s_, so in enumerate(["s74", "s75", "s86", "s87"]):
        A(f"buffer_load_dwordx2 {vr(32+2*s_,2)}, v7, s[32:35], {so} offen offset:2048 {DL}")
    for s_, so in enumerate(["s50", "s81", "s82", "s83"]):
        A(f"buffer_load_dwordx4 {vr(40+4*s_)}, v6, s[32:35], {so} offen {DL}")
    A(f"""
    s_mul_i32 s51, s3, {LNA}
    v_lshl_add_u32 v12, v1, 3, s51
    v_and_b32 v5, 7, v2
    v_mul_u32_u24 v5, {LNA}, v5
    v_lshl_add_u32 v5, v3, 4, v5
    s_waitcnt vmcnt(4)
    """)
    A("v_max3_f32 v8, v32, v34, v36\nv_max_f32 v8, v8, v38")
    for s in range(4):
        A(f"v_sub_f32 v{32+2*s}, v{32+2*s}, v8\nv_mul_f32 v{32+2*s}, s45, v{32+2*s}")
    for s in range(4):
        A(f"v_exp_f32 v{32+2*s}, v{32+2*s}")
    A("v_mul_f32 v9, v32, v33")
    for s in range(1, 4):
        A(f"v_fmac_f32 v9, v{32+2*s}, v{33+2*s}")
    A("v_rcp_f32 v9, v9")
    for s in range(4):
        A(f"v_mul_f32 v{32+2*s}, v{32+2*s}, v9")
    A("s_waitcnt vmcnt(0)")
    for e in range(4):
        A(f"v_mul_f32 v{40+e}, v32, v{40+e}")
        for s in range(1, 4):
            A(f"v_fmac_f32 v{40+e}, v{32+2*s}, v{40+4*s+e}")
    for m in range(2):
        A(f"v_cvt_pk_bf16_f32 v{16+m}, v{40+2*m}, v{41+2*m}")
    A(f"""
    ds_write_b64 v12, v[16:17] offset:{L_LN}
    s_waitcnt lgkmcnt(0)
    s_barrier
    s_cmp_ge_u32 s3, 4
    s_cbranch_scc1 {N}_A_bar2
    """)
    for kb in range(8):
        A(f"ds_read_b128 {vr(40+4*kb)}, v5 offset:{L_LN + kb*64}")
    A(f"""
    v_mul_u32_u24 v6, {4*1792}, v3
    v_lshl_add_u32 v6, v2, 2, v6
    s_lshr_b32 s51, s73, 4
    s_lshl_b32 s51, s51, 8
    s_lshl_b32 s52, s3, 6
    s_add_u32 s51, s51, s52
    s_add_u32 s51, s51, {WS_HACC}
    s_add_u32 s52, s51, {2*1792}
    """)
    for kb in range(8):
        A(f"s_waitcnt lgkmcnt({7-kb})")
        c = "0" if kb == 0 else "v[24:27]"
        A(f"v_mfma_f32_16x16x32_bf16 v[24:27], {vr(40+4*kb)}, {vr(136+4*kb)}, {c}")
    A(f"""
    s_mov_b32 exec_lo, -1
    s_mov_b32 exec_hi, 0
    buffer_atomic_add_f32 v24, v6, s[24:27], s51 offen
    buffer_atomic_add_f32 v25, v6, s[24:27], s51 offen offset:1792
    buffer_atomic_add_f32 v26, v6, s[24:27], s52 offen
    buffer_atomic_add_f32 v27, v6, s[24:27], s52 offen offset:1792
    s_mov_b64 exec, -1
    """)
    stamp(12)
    A("s_waitcnt vmcnt(0)")
    A.label(f"{N}_A_bar2")
    A(f"""
    s_nop 1
    s_cmp_eq_u32 s85, 1
    s_cbranch_scc1 {N}_nb4
    s_barrier
    {N}_nb4:
    s_cmp_lg_u32 s3, 0
    s_cbranch_scc1 {N}_done
    v_mov_b32 v8, s62
    v_mov_b32 v9, s63
    v_lshlrev_b32 v10, 14, v1
    s_lshl_b32 s51, s73, 7
    s_add_u32 s51, s51, {WS_F2}
    s_mov_b64 exec, {(1<<NREP)-1}
    buffer_store_dwordx2 v[8:9], v10, s[24:27], s51 offen sc1
    s_mov_b64 exec, -1
    """)
    stamp(4)
    A(f"s_branch {N}_done")
    F2CODE = f"s_and_b32 s51, s2, {NREP-1}\ns_lshl_b32 s51, s51, 14\ns_add_u32 s51, s51, {WS_F2}"
    A.label(f"{N}_stageB")
    A(f"""
    s_nop 1
    s_mul_i32 s51, s3, 14336
    s_add_u32 s51, s51, {L_W}
    v_lshl_add_u32 v6, v1, 4, s51
    """)
    for kb in range(14):
        A(f"ds_read_b128 {vr(132+4*kb)}, v6 offset:{kb*1024}")
    A(f"v_lshlrev_b32 v6, 5, v1\nv_min_u32 v6, {55*32}, v6")
    flag_poll("B", F2CODE, 112)
    stamp(13)
    A(f"""
    s_mul_i32 s52, s3, 1792
    s_add_u32 s52, s52, {WS_HACC}
    buffer_load_dwordx4 v[32:35], v6, s[32:35], s52 offen {DL}
    buffer_load_dwordx4 v[36:39], v6, s[32:35], s52 offen offset:16 {DL}
    v_and_b32 v5, 7, v2
    v_mul_u32_u24 v5, {LNS}, v5
    v_lshl_add_u32 v5, v3, 4, v5
    s_waitcnt vmcnt(0)
    """)
    stamp(14)
    unpack_h(A, 32, 128, 32, 11)
    A("v_cmp_gt_u32 vcc, 56, v1")
    for k in range(8):
        A(f"v_cndmask_b32 v{32+k}, 0, v{32+k}, vcc")
    layernorm8(A, 32, 12, 40)
    A(f"""
    s_mul_i32 s51, s3, {LNS}
    v_lshl_add_u32 v6, v1, 4, s51
    ds_write_b128 v6, v[12:15] offset:{L_LN}
    s_waitcnt lgkmcnt(0)
    s_cmp_eq_u32 s85, 1
    s_cbranch_scc1 {N}_nb5
    s_barrier
    {N}_nb5:
    """)
    for kb in range(14):
        A(f"ds_read_b128 {vr(32+4*kb)}, v5 offset:{L_LN + kb*64}")
    for kb in range(14):
        A(f"s_waitcnt lgkmcnt({13-kb})")
        c = "0" if kb == 0 else "v[24:27]"
        A(f"v_mfma_f32_16x16x32_bf16 v[24:27], {vr(32+4*kb)}, {vr(132+4*kb)}, {c}")
    for r in range(4):
        round_bf16(A, 24 + r)
    for r in range(4):
        A(f"v_mul_f32_dpp v{28+r}, v{24+r}, v{24+r} row_shl:8 row_mask:0xf bank_mask:0xf")
    A(f"""
    v_cvt_pk_bf16_f32 v28, v28, v29
    v_cvt_pk_bf16_f32 v30, v30, v31
    s_lshl_b32 s51, s3, 7
    v_lshlrev_b32 v5, 6, v3
    v_lshl_add_u32 v5, v2, 1, v5
    v_add_u32 v5, s51, v5
    v_lshl_add_u32 v7, v1, 4, s51
    s_mov_b32 exec_lo, 0x00ff00ff
    s_mov_b32 exec_hi, 0
    ds_write_b16 v5, v28 offset:{L_O}
    ds_write_b16_d16_hi v5, v28 offset:{L_O+16}
    ds_write_b16 v5, v30 offset:{L_O+32}
    ds_write_b16_d16_hi v5, v30 offset:{L_O+48}
    s_mov_b64 exec, 0xff
    s_waitcnt lgkmcnt(0)
    ds_read_b128 v[32:35], v7 offset:{L_O}
    v_mul_u32_u24 v6, 3584, v1
    s_lshl_b32 s51, s73, 7
    s_lshl_b32 s52, s3, 4
    s_add_u32 s51, s51, s52
    s_add_u32 s51, s51, {WS_HH}
    s_waitcnt lgkmcnt(0)
    buffer_store_dwordx4 v[32:35], v6, s[24:27], s51 offen sc1
    s_mov_b64 exec, -1
    s_waitcnt vmcnt(0)
    s_cmp_eq_u32 s85, 1
    s_cbranch_scc1 {N}_nb6
    s_barrier
    {N}_nb6:
    s_cmp_lg_u32 s3, 0
    s_cbranch_scc1 {N}_done
    v_mov_b32 v8, s62
    v_mov_b32 v9, s63
    v_mov_b32 v10, 0
    s_lshl_b32 s51, s73, 7
    s_add_u32 s51, s51, {WS_F3}
    s_mov_b64 exec, 1
    buffer_store_dwordx2 v[8:9], v10, s[24:27], s51 offen sc1
    s_mov_b64 exec, -1
    """)
    stamp(5)
    A(f"s_branch {N}_done")
    A.label(f"{N}_stageC")
    A(f"""
    s_nop 1
    v_and_b32 v5, 7, v2
    v_mul_u32_u24 v5, {HHS}, v5
    v_lshl_add_u32 v5, v3, 4, v5
    s_mul_i32 s50, s3, {7*64}
    v_add_u32 v5, s50, v5
    s_mul_i32 s50, s3, 3584
    s_add_u32 s50, s50, {WS_HH}
    v_lshlrev_b32 v18, 4, v1
    s_mul_i32 s51, s3, {HHS}
    v_add_u32 v19, s51, v18
    s_mul_i32 s51, s3, {7*2048}
    s_add_u32 s51, s51, {L_W}
    v_lshl_add_u32 v7, v1, 4, s51
    """)
    for q in range(14):
        A(f"ds_read_b128 {vr(64+4*q)}, v7 offset:{q*1024}")
    A(f"""
    v_lshrrev_b32 v6, 5, v0
    v_and_b32 v6, 7, v6
    v_mul_u32_u24 v6, 896, v6
    v_and_b32 v9, 31, v0
    v_lshl_add_u32 v6, v9, 1, v6
    v_lshlrev_b32 v9, 1, v6
    s_lshl_b32 s53, s73, 6
    s_lshl_b32 s52, s73, 7
    s_add_u32 s52, s52, {WS_HACC}
    buffer_load_ushort v10, v6, s[28:31], s53 offen
    """)
    flag_poll("CF", F2CODE, 112)
    stamp(13)
    A(f"buffer_load_dword v11, v9, s[32:35], s52 offen {DL}")
    flag_poll("C3", f"s_mov_b32 s51, {WS_F3}", 28)
    stamp(15)
    for q in range(4):
        if q == 3: A("s_mov_b32 exec_hi, 0")
        A(f"buffer_load_dwordx4 {vr(32+4*q)}, v18, s[32:35], s50 offen offset:{q*1024} {DL}")
    A("s_mov_b64 exec, -1")
    for q in range(4):
        A(f"s_waitcnt vmcnt({3-q})")
        if q == 3: A("s_mov_b32 exec_hi, 0")
        A(f"ds_write_b128 v19, {vr(32+4*q)} offset:{q*1024}")
    A("s_mov_b64 exec, -1\ns_waitcnt lgkmcnt(0)\ns_barrier")
    for q in range(7):
        A(f"ds_read_b128 {vr(32+4*q)}, v5 offset:{q*64}")
    A("s_waitcnt lgkmcnt(0)")
    for q in range(7):
        for nt in range(2):
            acc = 20 + 4*nt
            c = "0" if q == 0 else vr(acc)
            A(f"v_mfma_f32_16x16x32_bf16 {vr(acc)}, {vr(32+4*q)}, {vr(64+4*(2*q+nt))}, {c}")
    A(f"""
    v_and_b32 v5, 1, v3
    v_lshlrev_b32 v5, 9, v5
    v_lshl_add_u32 v5, v2, 2, v5
    s_lshl_b32 s51, s3, 10
    s_add_u32 s51, s51, {L_RED}
    v_add_u32 v5, s51, v5
    """)
    round_bf16(A, 11)
    A("v_lshlrev_b32 v10, 16, v10\nv_add_f32 v10, v10, v11")
    round_bf16(A, 10)
    for nt in range(2):
        for r in range(4):
            A(f"ds_write_b32 v5, v{20+4*nt+r} offset:{r*128 + nt*64}")
    A(f"""
    s_waitcnt lgkmcnt(0)
    s_cmp_eq_u32 s85, 1
    s_cbranch_scc1 {N}_nb7
    s_barrier
    {N}_nb7:
    s_cmp_ge_u32 s3, 4
    s_cbranch_scc1 {N}_done
    v_lshlrev_b32 v5, 2, v0
    v_add_u32 v5, {L_RED}, v5
    """)
    for w in range(8):
        A(f"ds_read_b32 v{16+w}, v5 offset:{w*1024}")
    A(f"""
    s_mov_b32 s56, s70
    s_mov_b32 s57, s71
    s_min_u32 s58, s26, {8*896}
    s_mov_b32 s59, 0x00020000
    s_waitcnt lgkmcnt(0)
    v_add_f32 v16, v16, v17
    v_add_f32 v18, v18, v19
    v_add_f32 v20, v20, v21
    v_add_f32 v22, v22, v23
    v_add_f32 v16, v16, v18
    v_add_f32 v20, v20, v22
    v_add_f32 v16, v16, v20
    """)
    round_bf16(A, 16)
    A(f"""
    v_add_f32 v10, v10, v16
    v_cvt_pk_bf16_f32 v10, v10, v10
    buffer_store_short v10, v6, s[56:59], s53 offen
    s_cmp_lg_u32 s73, 0
    s_cbranch_scc1 {N}_noep
    s_cmp_lg_u32 s3, 0
    s_cbranch_scc1 {N}_noep
    v_mov_b32 v12, s62
    v_mov_b32 v13, s63
    v_mov_b32 v14, 0
    s_mov_b32 s51, {WS_EP}
    s_mov_b64 exec, 1
    buffer_store_dwordx2 v[12:13], v14, s[24:27], s51 offen sc1
    s_mov_b64 exec, -1
    """)
    A.label(f"{N}_noep")
    stamp(6)
    A.label(f"{N}_done")
    A(f"""
    s_cmp_eq_u32 s85, 1
    s_cbranch_scc1 {N}_dryret
    """)
    A.label(f"{N}_exit")
    A("s_endpgm")
    return A.L

if __name__ == "__main__":
    name = KN + "_kernel"
    open("v14.s", "w").write(single_file(gen(name), name, 256, 512, LDS_SIZE, 256))
    open("v14ts.s", "w").write(single_file(gen(name, ts=True), name, 256, 512, LDS_SIZE, 256))
```
